```python
import torch

def _softmax(x, axis=-1):
    return torch.softmax(x, dim=axis)
def _gelu(x):
    return torch.nn.functional.gelu(x, approximate="tanh")
def _silu(x):
    return torch.nn.functional.silu(x)
def _sigmoid(x):
    return torch.sigmoid(x)
def _layernorm(x, axis=-1, eps=1e-5):
    m = x.mean(dim=axis, keepdim=True)
    v = x.var(dim=axis, keepdim=True, unbiased=False)
    return (x - m) / torch.sqrt(v + eps)
def _scatter_add(tgt, idx, src, axis=0):
    return tgt.clone().index_add_(axis, idx, src)
def _segment_sum(src, seg, n):
    out = torch.zeros((n,) + src.shape[1:], dtype=src.dtype)
    return out.index_add_(0, seg, src)
def _pad(x, pw):
    flat = tuple(v for pair in reversed(pw) for v in pair)
    return torch.nn.functional.pad(x, flat)

kernel_name = 'parallel_sum__gqa_block_cached__glu_gated_swiglu__decode'

def setup_inputs():

    _w = (lambda a: (lambda t: t.to(torch.bfloat16) if t.is_floating_point() else t)(torch.as_tensor(a)))
    def _A_setup():
        B, Sq, D = 1, 1, 640
        Hq, Hkv, Sk, Dh = 32, 32, 8192, 128
        assert Hq % Hkv == 0, (Hq, Hkv)
        return {
            "x": _w((lambda *s: torch.randn(*s, dtype=torch.bfloat16) * 0.05)(B, Sq, D)),
            "k_cache": _w((lambda *s: torch.randn(*s, dtype=torch.bfloat16) * 1.6)(B, Hkv, Sk, Dh)),
            "v_cache": _w((lambda *s: torch.randn(*s, dtype=torch.bfloat16) * 0.8)(B, Hkv, Sk, Dh)),
            "wq": _w((lambda *s: torch.randn(*s, dtype=torch.bfloat16) * 1.6)(D, Hq * Dh) * (D ** -0.5)),
            "wo": _w((lambda *s: torch.randn(*s, dtype=torch.bfloat16) * 0.8)(Hq * Dh, D) * ((Hq * Dh) ** -0.5)),
        }
    _A_in = _A_setup()

    def _B_setup():
        B, S, D, F = 1, 1, 640, 1728
        return {
            "x": _w((lambda *s: torch.randn(*s, dtype=torch.bfloat16) * 0.05)(B, S, D)),
            "w1": _w((lambda *s: torch.randn(*s, dtype=torch.bfloat16) * 0.4)(D, F) * (2.0 / D) ** 0.5),
            "w3": _w((lambda *s: torch.randn(*s, dtype=torch.bfloat16) * 0.4)(D, F) * (2.0 / D) ** 0.5),
            "w2": _w((lambda *s: torch.randn(*s, dtype=torch.bfloat16) * 0.4)(F, D) * (2.0 / F) ** 0.5),
        }
    _B_in = _B_setup()

    return {
        "A_x": _A_in["x"],
        "A_k_cache": _A_in["k_cache"],
        "A_v_cache": _A_in["v_cache"],
        "A_wq": _A_in["wq"],
        "A_wo": _A_in["wo"],
        "B_x": _B_in["x"],
        "B_w1": _B_in["w1"],
        "B_w3": _B_in["w3"],
        "B_w2": _B_in["w2"],
    }

def reference(A_x, A_k_cache, A_v_cache, A_wq, A_wo, B_x, B_w1, B_w3, B_w2):
    def _A_ref(x, k_cache, v_cache, wq, wo):
        B, Sq, D = x.shape
        Hq, Dh = 32, 128
        Hkv = k_cache.shape[1]
        rep = Hq // Hkv
        q = (lambda x, *d: x.permute(*d))((x @ wq).reshape(B, Sq, Hq, Dh), 0, 2, 1, 3)
        k = (lambda x, n, axis: torch.repeat_interleave(x, n, dim=axis))(k_cache, rep, axis=1)
        v = (lambda x, n, axis: torch.repeat_interleave(x, n, dim=axis))(v_cache, rep, axis=1)
        scores = torch.einsum("bhqd,bhkd->bhqk", q, k) * (Dh ** -0.5)
        p = _softmax(scores, axis=-1)
        o = torch.einsum("bhqk,bhkd->bhqd", p, v)
        return (lambda x, *d: x.permute(*d))(o, 0, 2, 1, 3).reshape(B, Sq, Hq * Dh) @ wo

    def _B_ref(x, w1, w3, w2):
        gate = torch.einsum("bsd,df->bsf", x, w1)
        up = torch.einsum("bsd,df->bsf", x, w3)
        h = _silu(gate) * up
        out = torch.einsum("bsf,fd->bsd", h, w2)
        return out

    x = A_x
    xn = _layernorm(x, axis=-1)
    return x + _A_ref(xn, A_k_cache, A_v_cache, A_wq, A_wo) + _B_ref(xn, B_w1, B_w3, B_w2)
```

```python
NAME = 'parallel_sum__gqa_block_cached__glu_gated_swiglu__decode'
HDR = """; Kernarg layout for this problem (96 bytes, ptrs only, base s[0:1]):
"""
class Asm:
    def __init__(self):
        self.lines = []
        self.nlab = 0
    def __call__(self, s=''):
        for l in s.split('\n'):
            self.lines.append(l if (l.strip().endswith(':') and not l.strip().startswith(';')) else '    ' + l.strip())
    def label(self, base='L'):
        self.nlab += 1
        return f'{base}_{self.nlab}'
    def text(self):
        return '\n'.join(self.lines) + '\n'

def kernel_file(kernels, launch_lines):
    out = HDR + ''.join(l + '\n' for l in launch_lines)
    out += '.amdgcn_target "amdgcn-amd-amdhsa--gfx950"\n.text\n'
    for label, body, nv, ns, ao in kernels:
        out += f'.globl {label}\n.p2align 8\n.type {label},@function\n{label}:\n{body}'
    out += '.section .rodata,"a"\n'
    for label, body, nv, ns, ao in kernels:
        out += f""".p2align 6
.amdhsa_kernel {label}
  .amdhsa_next_free_vgpr {nv}
  .amdhsa_next_free_sgpr {ns}
  .amdhsa_accum_offset {ao}
  .amdhsa_group_segment_fixed_size 0
  .amdhsa_kernarg_size 96
  .amdhsa_user_sgpr_count 2
  .amdhsa_user_sgpr_kernarg_segment_ptr 1
  .amdhsa_system_sgpr_workgroup_id_x 1
  .amdhsa_float_denorm_mode_32 3
.end_amdhsa_kernel
"""
    return out
```

```python
import re
TRANS = ('v_exp_f32', 'v_log_f32', 'v_rcp_f32', 'v_rsq_f32', 'v_sqrt_f32', 'v_sin_f32', 'v_cos_f32')
def split_ops(s):
    out, depth, cur = [], 0, ''
    for ch in s:
        if ch == '[': depth += 1
        if ch == ']': depth -= 1
        if ch == ',' and depth == 0:
            out.append(cur.strip()); cur = ''
        else: cur += ch
    if cur.strip(): out.append(cur.strip())
    return out
def regs(tok):
    t = tok.split()[0] if tok.split() else ''
    t = t.lstrip('-')
    if t.startswith('abs(') or t.startswith('|'):
        t = t.replace('abs(', '').replace(')', '').replace('|', '')
    m = re.fullmatch(r'([vsa])(\d+)', t)
    if m: return [(m.group(1), int(m.group(2)))]
    m = re.fullmatch(r'([vsa])\[(\d+):(\d+)\]', t)
    if m: return [(m.group(1), i) for i in range(int(m.group(2)), int(m.group(3)) + 1)]
    if t == 'vcc': return [('s', 106), ('s', 107)]
    if t == 'vcc_lo': return [('s', 106)]
    if t == 'vcc_hi': return [('s', 107)]
    if t == 'exec': return [('s', 126), ('s', 127)]
    if t == 'm0': return [('s', 124)]
    return []
class Ins:
    pass
def parse(line):
    s = line.split(';')[0].strip()
    if not s or s.endswith(':') or s.startswith('.'): return None
    p = s.split(None, 1)
    I = Ins(); I.op = p[0]; rest = p[1] if len(p) > 1 else ''
    I.ops = split_ops(rest); I.text = s
    op = I.op
    base = re.sub(r'_(e32|e64|dpp|sdwa)$', '', op); I.base = base
    I.valu = op.startswith('v_') and not op.startswith('v_mfma') and not op.startswith('v_smfmac')
    I.mfma = op.startswith('v_mfma')
    I.vmem = op.startswith(('buffer_', 'global_', 'flat_', 'scratch_'))
    I.ds = op.startswith('ds_')
    I.salu = op.startswith('s_')
    I.dpp = ('row_' in rest or 'quad_perm' in rest or 'wave_' in rest) and I.valu
    I.trans = base in TRANS
    I.dot = base.startswith('v_dot')
    I.wv, I.rv, I.ws, I.rs = set(), set(), set(), set()
    def add(lst, wv, ws):
        for k, i in lst:
            (wv if k in 'va' else ws).add((k, i))
    o = I.ops
    if I.valu or I.mfma:
        if base.startswith('v_cmp'):
            add(regs(o[0]), I.wv, I.ws)
            if base.startswith('v_cmpx'): I.ws |= {('s', 126), ('s', 127)}
            for t in o[1:]: add(regs(t), I.rv, I.rs)
        elif base in ('v_readfirstlane_b32', 'v_readlane_b32'):
            add(regs(o[0]), I.wv, I.ws)
            for t in o[1:]: add(regs(t), I.rv, I.rs)
        elif base.startswith('v_permlane') and 'swap' in base:
            for t in o[:2]:
                add(regs(t), I.wv, I.ws); add(regs(t), I.rv, I.rs)
        elif base in ('v_add_co_u32', 'v_sub_co_u32', 'v_addc_co_u32', 'v_subb_co_u32', 'v_subrev_co_u32', 'v_div_scale_f32', 'v_mad_u64_u32'):
            add(regs(o[0]), I.wv, I.ws); add(regs(o[1]), I.wv, I.ws)
            for t in o[2:]: add(regs(t), I.rv, I.rs)
        else:
            add(regs(o[0]), I.wv, I.ws)
            for t in o[1:]: add(regs(t), I.rv, I.rs)
            if base in ('v_fmac_f32', 'v_dot2c_f32_bf16', 'v_pk_fmac_f16', 'v_writelane_b32', 'v_mac_f32') or I.dpp:
                add(regs(o[0]), I.rv, I.rs)
            if base == 'v_cndmask_b32' and len(o) == 3: I.rs |= {('s', 106), ('s', 107)}
            if base in ('v_div_fmas_f32',): I.rs |= {('s', 106), ('s', 107)}
    elif I.vmem:
        st = '_store' in op or ('atomic' in op)
        I.store = '_store' in op
        ld = '_load' in op
        lds = ' lds' in (' ' + rest) or 'load_lds' in op
        if op.startswith('buffer_'):
            if ld and not lds:
                add(regs(o[0]), I.wv, I.ws); srcs = o[1:]
            else: srcs = o
            if 'atomic' in op and 'sc0' in rest: add(regs(o[0]), I.wv, I.ws)
            for t in srcs: add(regs(t), I.rv, I.rs)
            I.sdata = set(regs(o[0])) if I.store else set()
        else:
            if ld and not lds:
                add(regs(o[0]), I.wv, I.ws); srcs = o[1:]
            elif 'atomic' in op and 'sc0' in rest and len(o) == 4:
                add(regs(o[0]), I.wv, I.ws); srcs = o[1:]
            else: srcs = o
            for t in srcs: add(regs(t), I.rv, I.rs)
            I.sdata = set(regs(o[1])) if I.store else set()
        I.wide = I.store and ('x4' in op or 'x3' in op)
    elif I.ds:
        if base.startswith('ds_read') or base in ('ds_bpermute_b32', 'ds_permute_b32', 'ds_swizzle_b32') or '_rtn' in base:
            add(regs(o[0]), I.wv, I.ws); srcs = o[1:]
        else: srcs = o
        for t in srcs: add(regs(t), I.rv, I.rs)
    elif I.salu:
        if op.startswith(('s_cmp', 's_cbranch', 's_branch', 's_waitcnt', 's_nop', 's_barrier', 's_endpgm', 's_sleep', 's_setprio', 's_bitcmp')):
            for t in o: add(regs(t), I.rv, I.rs)
        else:
            if o: add(regs(o[0]), I.wv, I.ws)
            for t in o[1:]: add(regs(t), I.rv, I.rs)
            if 'saveexec' in op: I.ws |= {('s', 126), ('s', 127)}; I.rs |= {('s', 126), ('s', 127)}
    return I
def mfma_passes(op):
    if '32x32x16' in op or '32x32x8' in op: return 8
    if '16x16x32' in op or '16x16x16' in op: return 4
    if '4x4x4' in op: return 2
    raise ValueError(op)
def fix(lines, verbose=False):
    out = []
    t = 0
    lastw = {}
    stores = []
    mfma_c = []
    nins = 0
    for line in lines:
        s = line.split(';')[0].strip()
        if s.endswith(':'):
            for r, (tw, w) in list(lastw.items()):
                if tw < t - 1: lastw[r] = (t - 1, w)
            stores = [(max(tw, t - 1), r) for tw, r in stores]
            out.append(line); continue
        I = parse(line)
        if I is None:
            out.append(line); continue
        need = 0; why = ''
        def req(r, n, reason):
            nonlocal need, why
            if r in lastw:
                tw, w = lastw[r]
                el = t - tw - 1
                if n - el > need: need = n - el; why = reason + f' reg={r} by "{w.text}"'
        def wr(r):
            return lastw[r][1] if r in lastw else None
        reads = I.rv | I.rs
        for r in I.rv:
            w = wr(r)
            if w is None: continue
            if w.mfma:
                p = mfma_passes(w.op)
                if I.mfma:
                    cregs = set(regs(I.ops[3]));
                    if r in cregs and set(regs(I.ops[3])) == w.wv and mfma_passes(I.op) == p and not (r in set(regs(I.ops[1])) | set(regs(I.ops[2]))):
                        req(r, 2 if p == 2 else 0, 'mfma C chain')
                    elif r in set(regs(I.ops[1])) | set(regs(I.ops[2])): req(r, {2: 5, 4: 8, 8: 12}[p], 'mfma D->A/B')
                    else: req(r, {2: 4, 4: 6, 8: 10}[p], 'mfma D->C overlap')
                else: req(r, {2: 5, 4: 8, 8: 12}[p], 'mfma D->read')
                continue
            if not w.valu: continue
            if I.mfma: req(r, 2, 'valu->mfma')
            if I.dpp: req(r, 2, 'valu->dpp')
            if I.base.startswith('v_permlane'): req(r, 2, 'valu->permlane')
            if I.base in ('v_readfirstlane_b32', 'v_readlane_b32'): req(r, 1, 'valu->readlane')
            if w.trans and (I.valu or I.mfma) and not I.trans: req(r, 1, 'trans->use')
            if w.trans and I.trans: req(r, 1, 'trans->trans(safe)')
            if w.dot:
                if I.dot and I.base == w.base:
                    if I.base == 'v_dot2c_f32_bf16': ab = set(regs(I.ops[1])) | set(regs(I.ops[2]))
                    else: ab = set(regs(I.ops[1])) | set(regs(I.ops[2]))
                    if r in ab: req(r, 3, 'dot->dot AB')
                else: req(r, 3, 'dot->other read')
        for r in I.wv:
            w = wr(r)
            if w is None: continue
            if w.dot and not (I.dot and I.base == w.base) and (I.valu or I.vmem or I.ds): req(r, 3, 'dot->other write')
            if w.mfma and not I.mfma: req(r, {2: 5, 4: 8, 8: 12}[mfma_passes(w.op)], 'mfma D->WAW')
        for r in I.rs:
            w = wr(r)
            if w is None or not w.valu: continue
            if I.valu:
                if I.base in ('v_readlane_b32', 'v_writelane_b32') and r in set(regs(I.ops[-1])): req(r, 4, 'valu sgpr->lane sel')
                if I.base == 'v_div_fmas_f32': req(r, 4, 'vcc->div_fmas')
                req(r, 2, 'valu sgpr->valu')
                if I.dpp and r in (('s', 126), ('s', 127)): req(r, 5, 'exec->dpp')
            if I.vmem: req(r, 5, 'valu sgpr->vmem')
            if I.salu: req(r, 1, 'valu sgpr->salu (pad)')
        if I.valu:
            for tw, rs in stores:
                if rs & I.wv:
                    el = t - tw - 1
                    if 2 - el > need: need = 2 - el; why = 'store data WAR'
            for tw, p, rs in mfma_c:
                if rs & I.wv:
                    el = t - tw - 1; n = {2: 1, 4: 3, 8: 7}[p]
                    if n - el > need: need = n - el; why = 'mfma srcC WAR'
        if need > 0:
            out.append(f'    s_nop {need - 1}')
            t += need; nins += 1
        out.append(line)
        if I.op == 's_nop': t += int(I.ops[0], 0) + 1
        else: t += 1
        for r in I.wv | I.ws:
            if I.valu or I.mfma: lastw[r] = (t - 1, I)
            else: lastw.pop(r, None)
        if I.vmem and getattr(I, 'wide', False): stores.append((t - 1, {x for x in I.sdata}))
        if I.mfma: mfma_c.append((t - 1, mfma_passes(I.op), set(regs(I.ops[3]))))
        stores = [x for x in stores if t - x[0] < 4]
        mfma_c = [x for x in mfma_c if t - x[0] < 10]
    if verbose: print('hazard nops inserted:', nins)
    return out
```

```python
import sys
from asmlib import *
import hazard

LOG2E = 0x3fb8aa3b
SCALE = 0x3db504f3
INV640 = 0x3acccccd
EPS = 0x3727c5ac
SENT = -1

L_QP = 0
L_QB = 4096
L_ML = 4352
L_FF = 4480
L_OP = 5120
L_YP = 9216
L_RED = 9216 + 20480
LDS_SIZE = 30720
WS_ML = 0
WS_Y = 0x10000
WS_STAMP = 0x8000000
NRED = 40

class G(Asm):
    def __init__(self):
        super().__init__()
        self.vm = []
    def vop(self, text, tag):
        self(text); self.vm.append(tag)
        assert len(self.vm) <= 63, len(self.vm)
    def vwait(self, tag):
        if tag not in self.vm: return
        idx = len(self.vm) - 1 - self.vm[::-1].index(tag)
        n = len(self.vm) - 1 - idx
        self(f's_waitcnt vmcnt({n})')
        self.vm = self.vm[idx + 1:]

V_TID, V_L16, V_LANE, V_C, V_G = 0, 1, 2, 3, 4
V_WQ, V_WOB, V_FFA, V_FFB, V_W2B = 5, 6, 7, 8, 9
T0 = 10
A0 = 16
V_SA, V_SB = 32, 33
V_PLA, V_PHA, V_PLB, V_PHB = 34, 35, 36, 37
V_X1L, V_X1H, V_X2L, V_X2H, V_XAL, V_XAH, V_XBL, V_XBH = range(38, 46)
OACC = 46
V_MCU, V_LCU = 54, 55
QF = 56
V_RDY = 60
V_IN = 62
RING = 64
W = 128
F1A, F1B, F3A, F3B, F2A, F2B = 208, 212, 216, 220, 224, 228
YA = 232
YB = 240
V_O1L, V_O1H, V_O2L, V_O2H = 248, 249, 250, 251
V_SC = 252
V_ZERO = 253
V_XR = 254
S_WG, S_WAVE = 2, 3
S_X, S_K, S_V, S_WQ, S_WO, S_W1, S_W3, S_W2, S_OUT, S_DBG, S_WS = 4, 6, 8, 10, 12, 16, 18, 20, 22, 24, 26
S_HEAD, S_SPLIT, S_T, S_T2 = 28, 29, 30, 31
R_K, R_V, R_WQ, R_WO, R_W1, R_W3, R_W2, R_X = 32, 36, 40, 44, 48, 52, 56, 60
M_B1, M_B0 = 64, 66
S_EX = 68
S_H = 70
S_4K = 72
S_RED = 80
S_ML = 82
S_Y = 84
S_ST = 86
S_CNT, S_LIM = 81, 100

def srd(r): return f's[{r}:{r+3}]'

def gen(opt):
    a = G()
    nt = ' nt' if opt.get('nt', 1) else ''
    ntw = ' nt' if opt.get('ntw', 1) else ''
    stamps = opt.get('stamps', 0)
    nst = [0]
    def stamp():
        if stamps:
            a(f's_memrealtime s[{S_ST+2*nst[0]}:{S_ST+2*nst[0]+1}]'); nst[0] += 1
    def allred(v, t, op):
        a(f'{op}_dpp v{v}, v{v}, v{v} quad_perm:[1,0,3,2] row_mask:0xf bank_mask:0xf')
        a(f'{op}_dpp v{v}, v{v}, v{v} quad_perm:[2,3,0,1] row_mask:0xf bank_mask:0xf')
        a(f'{op}_dpp v{v}, v{v}, v{v} row_half_mirror row_mask:0xf bank_mask:0xf')
        a(f'{op}_dpp v{v}, v{v}, v{v} row_mirror row_mask:0xf bank_mask:0xf')
        rows_allred(v, t, op)
    def rows_allred(v, t, op):
        a(f'v_mov_b32 v{t}, v{v}')
        a(f'v_permlane16_swap_b32 v{t}, v{v}')
        a(f'{op} v{v}, v{v}, v{t}')
        a(f'v_mov_b32 v{t}, v{v}')
        a(f'v_permlane32_swap_b32 v{t}, v{v}')
        a(f'{op} v{v}, v{v}, v{t}')
    def red8(v, op):
        a(f'{op}_dpp v{v}, v{v}, v{v} quad_perm:[1,0,3,2] row_mask:0xf bank_mask:0xf')
        a(f'{op}_dpp v{v}, v{v}, v{v} quad_perm:[2,3,0,1] row_mask:0xf bank_mask:0xf')
        a(f'{op}_dpp v{v}, v{v}, v{v} row_half_mirror row_mask:0xf bank_mask:0xf')
    def rne(dst, src):
        a(f'v_cvt_pk_bf16_f32 v{dst}, 0, v{src}')
    def transpose_reduce(dst):
        for i in range(8): a(f'v_add_f32_dpp v{A0+i}, v{A0+i}, v{A0+i} row_mirror row_mask:0xf bank_mask:0x3')
        for i in range(8): a(f'v_add_f32_dpp v{A0+i}, v{A0+i+8}, v{A0+i+8} row_mirror row_mask:0xf bank_mask:0xc')
        for i in range(4): a(f'v_add_f32_dpp v{A0+i}, v{A0+i}, v{A0+i} row_half_mirror row_mask:0xf bank_mask:0x5')
        for i in range(4): a(f'v_add_f32_dpp v{A0+i}, v{A0+i+4}, v{A0+i+4} row_half_mirror row_mask:0xf bank_mask:0xa')
        for i in range(4): a(f'v_add_f32_dpp v{A0+i}, v{A0+i}, v{A0+i} quad_perm:[2,3,0,1] row_mask:0xf bank_mask:0xf')
        a(f'v_cndmask_b32 v{A0}, v{A0}, v{A0+2}, s[{M_B1}:{M_B1+1}]')
        a(f'v_cndmask_b32 v{A0+1}, v{A0+1}, v{A0+3}, s[{M_B1}:{M_B1+1}]')
        for i in range(2): a(f'v_add_f32_dpp v{A0+i}, v{A0+i}, v{A0+i} quad_perm:[1,0,3,2] row_mask:0xf bank_mask:0xf')
        a(f'v_cndmask_b32 v{dst}, v{A0}, v{A0+1}, s[{M_B0}:{M_B0+1}]')
    def reduce_g(base):
        for i in range(4): a(f'v_permlane32_swap_b32 v{base+i}, v{base+i+4}')
        for i in range(4): a(f'v_add_f32 v{base+i}, v{base+i}, v{base+i+4}')
        a(f'v_permlane16_swap_b32 v{base}, v{base+2}')
        a(f'v_permlane16_swap_b32 v{base+1}, v{base+3}')
        a(f'v_add_f32 v{base}, v{base}, v{base+2}')
        a(f'v_add_f32 v{base+1}, v{base+1}, v{base+3}')

    a(f"""
    s_cmp_ge_u32 s2, 256
    s_cbranch_scc1 L_end
    """)
    stamp()
    a(f"""
    s_load_dwordx16 s[4:19], s[0:1], 0
    s_load_dwordx8 s[20:27], s[0:1], 64
    v_and_b32 v{V_LANE}, 63, v0
    v_lshrrev_b32 v{T0}, 6, v0
    v_lshlrev_b32 v{V_L16}, 4, v{V_LANE}
    v_readfirstlane_b32 s{S_WAVE}, v{T0}
    v_and_b32 v{V_C}, 15, v{V_LANE}
    v_lshrrev_b32 v{V_G}, 4, v{V_LANE}
    v_mov_b32 v{V_ZERO}, 0
    s_and_b32 s{S_T}, s2, 7
    s_lshr_b32 s{S_T2}, s2, 3
    s_and_b32 s{S_SPLIT}, s{S_T2}, 7
    s_lshr_b32 s{S_T2}, s{S_T2}, 3
    s_lshl_b32 s{S_HEAD}, s{S_T}, 2
    s_add_u32 s{S_HEAD}, s{S_HEAD}, s{S_T2}
    s_mov_b32 s{M_B1}, 0xcccccccc
    s_mov_b32 s{M_B1+1}, 0xcccccccc
    s_mov_b32 s{M_B0}, 0xaaaaaaaa
    s_mov_b32 s{M_B0+1}, 0xaaaaaaaa
    s_mov_b32 s{S_LIM}, 100000
    """)
    for k in range(1, 8): a(f's_movk_i32 s{S_4K+k}, {4096*k}')
    a(f"""
    s_mov_b32 s{S_T}, {20*8192}
    v_mul_lo_u32 v{V_WQ}, v{V_G}, s{S_T}
    v_lshl_add_u32 v{V_WQ}, v{V_C}, 4, v{V_WQ}
    v_mul_u32_u24 v{V_WOB}, 1280, v{V_G}
    v_lshl_add_u32 v{V_WOB}, v{V_C}, 4, v{V_WOB}
    v_add_u32 v{V_WOB}, 1024, v{V_WOB}
    v_mul_u32_u24 v{V_FFA}, 3456, v{V_LANE}
    v_add_u32 v{V_FFB}, {64*3456}, v{V_FFA}
    v_add_u32 v{V_W2B}, 1024, v{V_L16}
    """)
    a(f"""
    s_mul_i32 s{S_T}, s{S_WAVE}, 160
    v_mul_u32_u24 v{T0}, 40, v{V_G}
    v_add_u32 v{T0}, s{S_T}, v{T0}
    v_and_b32 v{T0+1}, 3, v{V_C}
    v_lshl_add_u32 v{T0+1}, v{T0+1}, 1, v{T0}
    v_add_u32 v{T0+1}, 32, v{T0+1}
    v_lshl_add_u32 v{T0}, v{V_C}, 1, v{T0}
    v_lshlrev_b32 v{T0+2}, 1, v{V_LANE}
    v_add_u32 v{T0+2}, s{S_T}, v{T0+2}
    v_add_u32 v{T0+3}, 128, v{T0+2}
    v_lshlrev_b32 v{T0+4}, 2, v{V_LANE}
    """)
    a(f"""
    s_and_b32 s{S_T}, s2, 7
    s_lshr_b32 s{S_T2}, s2, 3
    s_mul_i32 s68, s{S_T}, 32
    s_mul_i32 s69, s{S_T}, 24
    s_add_u32 s69, s69, 24
    s_cmp_lt_u32 s{S_T}, 3
    s_cselect_b32 s68, s68, s69
    s_cselect_b32 s69, 32, 24
    s_add_u32 s68, s68, s{S_T2}
    s_cmp_lt_u32 s{S_T2}, s69
    s_cselect_b32 s69, 1, 0
    """)
    a(f"""
    s_lshr_b32 s{S_RED}, s2, 1
    s_and_b32 s{S_T}, s2, 1
    s_cmp_eq_u32 s{S_T}, 0
    s_cselect_b32 s{S_RED}, s{S_RED}, 0x7fff
    s_waitcnt lgkmcnt(0)
    """)
    def mk_srd(r, ptr, off_sgpr, size):
        a(f's_add_u32 s{r}, s{ptr}, s{off_sgpr}')
        a(f's_addc_u32 s{r+1}, s{ptr+1}, 0')
        if isinstance(size, int): a(f's_mov_b32 s{r+2}, {size}')
        else: a(f's_mov_b32 s{r+2}, {size}')
        a(f's_mov_b32 s{r+3}, 0x20000')
    a(f"""
    s_mov_b32 s{R_X}, s{S_X}
    s_mov_b32 s{R_X+1}, s{S_X+1}
    s_movk_i32 s{R_X+2}, 1280
    s_mov_b32 s{R_X+3}, 0x20000
    s_add_u32 s{S_ML}, s{S_WS}, {WS_ML}
    s_addc_u32 s{S_ML+1}, s{S_WS+1}, 0
    s_add_u32 s{S_Y}, s{S_WS}, {WS_Y}
    s_addc_u32 s{S_Y+1}, s{S_WS+1}, 0
    """)
    a(f"""
    v_mov_b32 v26, -1
    v_mov_b32 v27, -1
    v_mov_b32 v28, -1
    v_mov_b32 v29, -1
    s_cmp_lg_u32 s{S_WAVE}, 0
    s_cbranch_scc1 L_noclr_ml
    s_lshl_b32 s{S_T}, s2, 7
    v_add_u32 v30, s{S_T}, v{V_L16}
    s_mov_b64 exec, 15
    global_store_dwordx4 v30, v[26:29], s[{S_ML}:{S_ML+1}] sc1
    s_mov_b64 exec, -1
    L_noclr_ml:
    s_cmp_ge_u32 s{S_RED}, {NRED}
    s_cbranch_scc1 L_noclr_y
    s_lshl_b32 s{S_T}, s{S_RED}, 14
    v_lshlrev_b32 v30, 4, v0
    v_add_u32 v30, s{S_T}, v30
    global_store_dwordx4 v30, v[26:29], s[{S_Y}:{S_Y+1}] sc1
    v_add_u32 v31, 8192, v30
    global_store_dwordx4 v31, v[26:29], s[{S_Y}:{S_Y+1}] sc1
    L_noclr_y:
    """)
    for i in range(5): a.vop(f'buffer_load_dword v{A0+i}, v{T0+4}, {srd(R_X)}, 0 offen offset:{256*i}', 'x')
    for i in range(4): a.vop(f'buffer_load_ushort v{A0+5+i}, v{T0+i}, {srd(R_X)}, 0 offen', 'x')
    a(f"""
    s_lshl_b32 s{S_T}, s{S_HEAD}, 8
    s_mul_i32 s{S_T2}, s{S_WAVE}, {80*8192}
    s_add_u32 s{S_T}, s{S_T}, s{S_T2}
    """)
    mk_srd(R_WQ, S_WQ, S_T, 79*8192+256)
    a(f"""
    s_lshl_b32 s{S_T}, s{S_HEAD}, 6
    s_lshl_b32 s{S_T2}, s{S_SPLIT}, 3
    s_add_u32 s{S_T}, s{S_T}, s{S_T2}
    s_add_u32 s{S_T}, s{S_T}, s{S_WAVE}
    s_lshl_b32 s{S_T}, s{S_T}, 15
    """)
    mk_srd(R_K, S_K, S_T, 32768)
    mk_srd(R_V, S_V, S_T, 32768)
    def kv_load(i):
        r = R_K if i < 32 else R_V
        t = i % 32
        so = '0' if t < 4 else f's{S_4K + (t >> 2)}'
        slot = RING + 4 * (i % 16)
        a.vop(f'buffer_load_dwordx4 v[{slot}:{slot+3}], v{V_L16}, {srd(r)}, {so} offen offset:{(t&3)*1024}{nt}', f'kv{i}')
    npre = opt.get('kpre', 0)
    for i in range(npre): kv_load(i)
    a(f's_mov_b32 s{S_T}, 0')
    a(f's_movk_i32 s{S_T2}, 8192')
    for t in range(20):
        a.vop(f'buffer_load_dwordx4 v[{W+4*t}:{W+4*t+3}], v{V_WQ}, {srd(R_WQ)}, s{S_T} offen{ntw}', f'wq{t}')
        if t < 19: a(f's_add_u32 s{S_T}, s{S_T}, s{S_T2}')
    for i in range(npre, 16): kv_load(i)
    a(f"""
    s_lshl_b32 s{S_T}, s68, 4
    s_mul_i32 s{S_T2}, s{S_WAVE}, {80*3456}
    s_add_u32 s{S_T}, s{S_T}, s{S_T2}
    s_mul_i32 s70, s69, {79*3456+16}
    """)
    mk_srd(R_W1, S_W1, S_T, 's70')
    mk_srd(R_W3, S_W3, S_T, 's70')
    a(f"""
    s_lshl_b32 s{S_T}, s68, 3
    s_add_u32 s{S_T}, s{S_T}, s{S_WAVE}
    s_mul_i32 s{S_T}, s{S_T}, 1280
    s_mul_i32 s70, s69, 1280
    """)
    mk_srd(R_W2, S_W2, S_T, 's70')
    a.vop(f'buffer_load_dwordx4 v[{F1A}:{F1A+3}], v{V_FFA}, {srd(R_W1)}, 0 offen{ntw}', 'ffn1')
    a.vop(f'buffer_load_dwordx4 v[{F1B}:{F1B+3}], v{V_FFB}, {srd(R_W1)}, 0 offen{ntw}', 'ffn1')
    a.vop(f'buffer_load_dwordx4 v[{F3A}:{F3A+3}], v{V_FFA}, {srd(R_W3)}, 0 offen{ntw}', 'ffn1')
    a.vop(f'buffer_load_dwordx4 v[{F3B}:{F3B+3}], v{V_FFB}, {srd(R_W3)}, 0 offen{ntw}', 'ffn1')
    a.vop(f'buffer_load_dwordx4 v[{F2A}:{F2A+3}], v{V_L16}, {srd(R_W2)}, 0 offen{ntw}', 'ffn2')
    a.vop(f'buffer_load_dwordx4 v[{F2B}:{F2B+3}], v{V_W2B}, {srd(R_W2)}, 0 offen{ntw}', 'ffn2')
    a(f"""
    s_lshl_b32 s{S_T}, s{S_HEAD}, 7
    s_lshl_b32 s{S_T2}, s{S_WAVE}, 4
    s_add_u32 s{S_T}, s{S_T}, s{S_T2}
    s_mul_i32 s{S_T}, s{S_T}, 1280
    """)
    mk_srd(R_WO, S_WO, S_T, 20480)

    a.vwait('x')
    stamp()
    for i in range(4): a(f'v_lshlrev_b32 v{T0+i}, 16, v{A0+5+i}')
    for i in range(5):
        a(f'v_and_b32 v{A0+5+2*i+1}, 0xffff0000, v{A0+i}')
        a(f'v_lshlrev_b32 v{A0+5+2*i}, 16, v{A0+i}')
    U = A0 + 5
    a(f'v_add_f32 v{A0}, v{U}, v{U+1}')
    for i in range(2, 10): a(f'v_add_f32 v{A0}, v{A0}, v{U+i}')
    allred(A0, A0+1, 'v_add_f32')
    a(f'v_mul_f32 v{A0}, {INV640}, v{A0}')
    a(f'v_sub_f32 v{U}, v{U}, v{A0}')
    a(f'v_mul_f32 v{A0+2}, v{U}, v{U}')
    for i in range(1, 10):
        a(f'v_sub_f32 v{U+i}, v{U+i}, v{A0}')
        a(f'v_fmac_f32 v{A0+2}, v{U+i}, v{U+i}')
    allred(A0+2, A0+1, 'v_add_f32')
    a(f'v_mul_f32 v{A0+2}, {INV640}, v{A0+2}')
    rne(A0, A0)
    rne(A0+2, A0+2)
    a(f'v_add_f32 v{A0+2}, {EPS}, v{A0+2}')
    rne(A0+2, A0+2)
    a(f'v_sqrt_f32 v{A0+2}, v{A0+2}')
    rne(A0+2, A0+2)
    a(f'v_rcp_f32 v{A0+2}, v{A0+2}')
    for i, (lo, hi) in enumerate([(V_X1L, V_X1H), (V_X2L, V_X2H), (V_XAL, V_XAH), (V_XBL, V_XBH)]):
        a(f'v_sub_f32 v{T0+i}, v{T0+i}, v{A0}')
        rne(T0+i, T0+i)
        a(f'v_mul_f32 v{T0+i}, v{T0+i}, v{A0+2}')
        rne(hi, T0+i)
        a(f'v_lshrrev_b32 v{lo}, 16, v{hi}')
    for i in range(8): a(f'v_mov_b32 v{OACC+i}, 0')

    for t in range(20):
        a.vwait(f'wq{t}')
        lo, hi, ln = (V_X1L, V_X1H, t) if t < 16 else (V_X2L, V_X2H, t - 16)
        for i in range(4):
            a(f'v_dot2c_f32_bf16_dpp v{OACC+2*i}, v{lo}, v{W+4*t+i} row_newbcast:{ln} row_mask:0xf bank_mask:0xf')
            a(f'v_dot2c_f32_bf16_dpp v{OACC+2*i+1}, v{hi}, v{W+4*t+i} row_newbcast:{ln} row_mask:0xf bank_mask:0xf')
    def wo_loads():
        for r in range(16):
            aa, b = r >> 2, r & 3
            if b == 0: a(f's_movk_i32 s{S_T}, {aa*5120}')
            a.vop(f'buffer_load_dwordx4 v[{W+4*r}:{W+4*r+3}], v{V_L16}, {srd(R_WO)}, s{S_T} offen offset:{b*1280}{ntw}', 'wo')
        for t in range(4):
            a(f's_movk_i32 s{S_T}, {t*5120}')
            a.vop(f'buffer_load_dwordx4 v[{W+64+4*t}:{W+64+4*t+3}], v{V_WOB}, {srd(R_WO)}, s{S_T} offen{ntw}', 'wo')
    a('s_nop 2')
    wo_loads()
    reduce_g(OACC)
    a(f"""
    s_lshl_b32 s{S_T}, s{S_WAVE}, 9
    v_lshlrev_b32 v{T0}, 5, v{V_C}
    v_lshl_add_u32 v{T0}, v{V_G}, 3, v{T0}
    v_add_u32 v{T0}, s{S_T}, v{T0}
    ds_write_b64 v{T0}, v[{OACC}:{OACC+1}] offset:{L_QP}
    s_waitcnt lgkmcnt(0)
    s_barrier
    s_cmp_lg_u32 s{S_WAVE}, 0
    s_cbranch_scc1 L_noready
    v_mov_b32 v{T0+1}, 1
    s_mov_b64 exec, 1
    global_atomic_add v{V_ZERO}, v{T0+1}, s[{S_DBG}:{S_DBG+1}] sc1
    s_mov_b64 exec, -1
    L_noready:
    s_cmp_ge_u32 s{S_WAVE}, 2
    s_cbranch_scc1 L_noq
    v_lshlrev_b32 v{T0}, 2, v0
    """)
    for w in range(8): a(f'ds_read_b32 v{A0+w}, v{T0} offset:{L_QP + 512*w}')
    a('s_waitcnt lgkmcnt(0)')
    for w in range(1, 8): a(f'v_add_f32 v{A0}, v{A0}, v{A0+w}')
    a(f"""
    v_cvt_pk_bf16_f32 v{A0}, v{A0}, v{A0}
    v_lshlrev_b32 v{T0}, 1, v0
    ds_write_b16 v{T0}, v{A0} offset:{L_QB}
    s_waitcnt lgkmcnt(0)
    L_noq:
    s_barrier
    v_lshlrev_b32 v{T0}, 4, v{V_C}
    ds_read_b128 v[{QF}:{QF+3}], v{T0} offset:{L_QB}
    s_waitcnt lgkmcnt(0)
    """)
    stamp()
    def k_step(i):
        a.vwait(f'kv{i}')
        slot = RING + 4 * (i % 16); acc = A0 + (i % 16)
        a(f'v_dot2_f32_bf16 v{acc}, v{slot}, v{QF}, 0')
        for j in range(1, 4): a(f'v_dot2_f32_bf16 v{acc}, v{slot+j}, v{QF+j}, v{acc}')
        kv_load(i + 16)
    for i in range(16): k_step(i)
    transpose_reduce(V_SA)
    a.vwait('ffn1')
    for i in range(16): a(f'v_mov_b32 v{A0+i}, 0')
    for (base, ld, lo, hi) in [(A0, F1A, V_XAL, V_XAH), (A0+8, F3A, V_XAL, V_XAH), (A0, F1B, V_XBL, V_XBH), (A0+8, F3B, V_XBL, V_XBH)]:
        for i in range(4):
            a(f'v_dot2c_f32_bf16 v{base+2*i}, v{lo}, v{ld+i}')
            a(f'v_dot2c_f32_bf16 v{base+2*i+1}, v{hi}, v{ld+i}')
    transpose_reduce(T0)
    rows_allred(T0, T0+1, 'v_add_f32')
    a(f"""
    s_lshl_b32 s{S_T}, s{S_WAVE}, 6
    v_lshlrev_b32 v{T0+1}, 2, v{V_C}
    v_add_u32 v{T0+1}, s{S_T}, v{T0+1}
    ds_write_b32 v{T0+1}, v{T0} offset:{L_FF}
    """)
    a.vop(f'global_load_dword v{V_RDY}, v{V_ZERO}, s[{S_DBG}:{S_DBG+1}] sc1', 'rdy')
    for i in range(16, 32): k_step(i)
    transpose_reduce(V_SB)
    for s in (V_SA, V_SB):
        rne(s, s)
        a(f'v_mul_f32 v{s}, {SCALE}, v{s}')
        rne(s, s)
    a(f'v_max_f32 v{T0}, v{V_SA}, v{V_SB}')
    allred(T0, T0+1, 'v_max_f32')
    a(f"""
    v_sub_f32 v{T0+2}, v{V_SA}, v{T0}
    v_sub_f32 v{T0+3}, v{V_SB}, v{T0}
    v_mul_f32 v{T0+2}, {LOG2E}, v{T0+2}
    v_mul_f32 v{T0+3}, {LOG2E}, v{T0+3}
    v_exp_f32 v{T0+2}, v{T0+2}
    v_exp_f32 v{T0+3}, v{T0+3}
    v_add_f32 v{T0+1}, v{T0+2}, v{T0+3}
    """)
    allred(T0+1, T0+2, 'v_add_f32')
    a(f"""
    s_lshl_b32 s{S_T}, s{S_WAVE}, 3
    v_mov_b32 v{T0+2}, s{S_T}
    ds_write_b64 v{T0+2}, v[{T0}:{T0+1}] offset:{L_ML}
    s_waitcnt lgkmcnt(0)
    s_barrier
    """)
    stamp()
    a(f"""
    v_and_b32 v{T0+2}, 7, v{V_LANE}
    v_lshlrev_b32 v{T0+2}, 3, v{T0+2}
    ds_read_b64 v[{T0}:{T0+1}], v{T0+2} offset:{L_ML}
    v_lshlrev_b32 v{T0+3}, 2, v{V_C}
    """)
    for w in range(8): a(f'ds_read_b32 v{A0+w}, v{T0+3} offset:{L_FF + 64*w}')
    a(f"""
    s_waitcnt lgkmcnt(0)
    v_mov_b32 v{V_MCU}, v{T0}
    """)
    red8(V_MCU, 'v_max_f32')
    a(f"""
    v_sub_f32 v{T0}, v{T0}, v{V_MCU}
    v_mul_f32 v{T0}, {LOG2E}, v{T0}
    v_exp_f32 v{T0}, v{T0}
    v_mul_f32 v{V_LCU}, v{T0}, v{T0+1}
    """)
    red8(V_LCU, 'v_add_f32')
    for (s, pl, ph) in [(V_SA, V_PLA, V_PHA), (V_SB, V_PLB, V_PHB)]:
        a(f"""
        v_sub_f32 v{s}, v{s}, v{V_MCU}
        v_mul_f32 v{s}, {LOG2E}, v{s}
        v_exp_f32 v{s}, v{s}
        """)
        rne(ph, s)
        a(f'v_lshrrev_b32 v{pl}, 16, v{ph}')
    a.vwait('rdy')
    a(f"""
    s_cmp_lg_u32 s{S_WAVE}, 0
    s_cbranch_scc1 L_nopub
    v_readfirstlane_b32 s{S_T}, v{V_RDY}
    s_cmp_ge_u32 s{S_T}, 256
    s_cbranch_scc1 L_rdy_ok
    s_mov_b32 s{S_CNT}, 0
    L_rdy_spin:
    s_add_u32 s{S_CNT}, s{S_CNT}, 1
    s_cmp_ge_u32 s{S_CNT}, s{S_LIM}
    s_cbranch_scc1 L_rdy_ok
    s_sleep 4
    global_load_dword v{V_RDY}, v{V_ZERO}, s[{S_DBG}:{S_DBG+1}] sc1
    s_waitcnt vmcnt(0)
    v_readfirstlane_b32 s{S_T}, v{V_RDY}
    s_cmp_lt_u32 s{S_T}, 256
    s_cbranch_scc1 L_rdy_spin
    L_rdy_ok:
    v_cmp_u_f32 vcc, v{V_MCU}, v{V_MCU}
    v_mov_b32 v{T0+2}, 0x7fc00000
    v_cndmask_b32 v{T0}, v{V_MCU}, v{T0+2}, vcc
    v_cmp_u_f32 vcc, v{V_LCU}, v{V_LCU}
    s_and_b32 s{S_T}, s2, 0xffffffc7
    s_lshl_b32 s{S_T}, s{S_T}, 7
    v_cndmask_b32 v{T0+1}, v{V_LCU}, v{T0+2}, vcc
    s_lshl_b32 s{S_T2}, s{S_SPLIT}, 3
    s_add_u32 s{S_T}, s{S_T}, s{S_T2}
    v_lshlrev_b32 v{T0+2}, 10, v{V_LANE}
    v_add_u32 v{T0+2}, s{S_T}, v{T0+2}
    s_mov_b64 exec, 0xff
    global_store_dwordx2 v{T0+2}, v[{T0}:{T0+1}], s[{S_ML}:{S_ML+1}] sc1
    s_mov_b64 exec, -1
    L_nopub:
    """)
    for w in range(1, 8): a(f'v_add_f32 v{A0}, v{A0}, v{A0+w}')
    rne(A0, A0)
    a(f"""
    v_mov_b32_dpp v{A0+1}, v{A0} row_ror:8 row_mask:0xf bank_mask:0xf
    v_mul_f32 v{A0+2}, {LOG2E ^ 0x80000000}, v{A0}
    v_exp_f32 v{A0+2}, v{A0+2}
    v_add_f32 v{A0+2}, 1.0, v{A0+2}
    v_rcp_f32 v{A0+2}, v{A0+2}
    v_mul_f32 v{A0+2}, v{A0}, v{A0+2}
    """)
    rne(A0+2, A0+2)
    a(f'v_mul_f32 v{A0+2}, v{A0+2}, v{A0+1}')
    rne(A0+2, A0+2)
    a(f"""
    v_readlane_b32 s{S_H}, v{A0+2}, s{S_WAVE}
    s_lshr_b32 s{S_H+1}, s{S_H}, 16
    """)
    for i in range(8):
        a(f'v_mov_b32 v{YA+i}, 0'); a(f'v_mov_b32 v{YB+i}, 0'); a(f'v_mov_b32 v{OACC+i}, 0')
    a.vwait('ffn2')
    for i in range(4):
        a(f'v_dot2c_f32_bf16 v{YA+2*i}, s{S_H+1}, v{F2A+i}')
        a(f'v_dot2c_f32_bf16 v{YA+2*i+1}, s{S_H}, v{F2A+i}')
        a(f'v_dot2c_f32_bf16 v{YB+2*i}, s{S_H+1}, v{F2B+i}')
        a(f'v_dot2c_f32_bf16 v{YB+2*i+1}, s{S_H}, v{F2B+i}')
    for i in range(32, 64):
        a.vwait(f'kv{i}')
        slot = RING + 4 * (i % 16)
        lo, hi = (V_PLA, V_PHA) if i < 48 else (V_PLB, V_PHB)
        ln = i % 16
        for j in range(4):
            a(f'v_dot2c_f32_bf16_dpp v{OACC+2*j}, v{lo}, v{slot+j} row_newbcast:{ln} row_mask:0xf bank_mask:0xf')
            a(f'v_dot2c_f32_bf16_dpp v{OACC+2*j+1}, v{hi}, v{slot+j} row_newbcast:{ln} row_mask:0xf bank_mask:0xf')
        if i + 16 < 64: kv_load(i + 16)
        if i == opt.get('inbox_at', 52):
            a(f"""
            s_lshl_b32 s{S_T}, s2, 7
            v_and_b32 v{T0+4}, 7, v{V_LANE}
            v_lshlrev_b32 v{T0+4}, 3, v{T0+4}
            v_add_u32 v{T0+4}, s{S_T}, v{T0+4}
            """)
            a.vop(f'global_load_dwordx2 v[{V_IN}:{V_IN+1}], v{T0+4}, s[{S_ML}:{S_ML+1}] sc1', 'inbox')
    stamp()
    reduce_g(OACC)
    a(f"""
    s_lshl_b32 s{S_T}, s{S_WAVE}, 9
    v_lshlrev_b32 v{T0}, 5, v{V_C}
    v_lshl_add_u32 v{T0}, v{V_G}, 3, v{T0}
    v_add_u32 v{T0}, s{S_T}, v{T0}
    ds_write_b64 v{T0}, v[{OACC}:{OACC+1}] offset:{L_OP}
    """)
    a.vwait('inbox')
    a(f"""
    s_mov_b32 s{S_CNT}, 0
    L_in_chk:
    v_cmp_eq_u32 vcc, -1, v{V_IN}
    v_cmp_eq_u32 s[{S_EX}:{S_EX+1}], -1, v{V_IN+1}
    s_or_b64 vcc, vcc, s[{S_EX}:{S_EX+1}]
    s_cbranch_scc0 L_in_ok
    s_add_u32 s{S_CNT}, s{S_CNT}, 1
    s_cmp_ge_u32 s{S_CNT}, s{S_LIM}
    s_cbranch_scc1 L_in_ok
    s_sleep 2
    global_load_dwordx2 v[{V_IN}:{V_IN+1}], v{T0+4}, s[{S_ML}:{S_ML+1}] sc1
    s_waitcnt vmcnt(0)
    s_branch L_in_chk
    L_in_ok:
    v_mov_b32 v{T0+1}, v{V_IN}
    """)
    red8(T0+1, 'v_max_f32')
    a(f"""
    v_sub_f32 v{V_IN}, v{V_IN}, v{T0+1}
    v_mul_f32 v{V_IN}, {LOG2E}, v{V_IN}
    v_exp_f32 v{V_IN}, v{V_IN}
    v_mul_f32 v{V_IN}, v{V_IN}, v{V_IN+1}
    """)
    red8(V_IN, 'v_add_f32')
    a(f"""
    v_sub_f32 v{T0+1}, v{V_MCU}, v{T0+1}
    v_mul_f32 v{T0+1}, {LOG2E}, v{T0+1}
    v_exp_f32 v{T0+1}, v{T0+1}
    v_rcp_f32 v{V_IN}, v{V_IN}
    v_mul_f32 v{V_SC}, v{T0+1}, v{V_IN}
    s_waitcnt lgkmcnt(0)
    s_barrier
    s_lshl_b32 s{S_T}, s{S_WAVE}, 6
    v_lshlrev_b32 v{T0}, 2, v{V_C}
    v_add_u32 v{T0}, s{S_T}, v{T0}
    """)
    for w in range(8): a(f'ds_read_b32 v{A0+w}, v{T0} offset:{L_OP + 512*w}')
    a(f"""
    v_and_b32 v{T0+1}, 3, v{V_C}
    v_lshlrev_b32 v{T0+1}, 2, v{T0+1}
    v_mul_u32_u24 v{T0+2}, 17, v{V_G}
    v_add_u32 v{T0+1}, v{T0+1}, v{T0+2}
    v_lshlrev_b32 v{T0+1}, 2, v{T0+1}
    s_waitcnt lgkmcnt(0)
    """)
    for w in range(1, 8): a(f'v_add_f32 v{A0}, v{A0}, v{A0+w}')
    a(f'v_mul_f32 v{A0}, v{A0}, v{V_SC}')
    rne(V_O1H, A0)
    a(f"""
    v_lshrrev_b32 v{V_O1L}, 16, v{V_O1H}
    ds_bpermute_b32 v{V_O2H}, v{T0+1}, v{V_O1H}
    """)
    a.vwait('wo')
    for r in range(16):
        for i in range(4):
            a(f'v_dot2c_f32_bf16_dpp v{YA+2*i}, v{V_O1L}, v{W+4*r+i} row_newbcast:{r} row_mask:0xf bank_mask:0xf')
            a(f'v_dot2c_f32_bf16_dpp v{YA+2*i+1}, v{V_O1H}, v{W+4*r+i} row_newbcast:{r} row_mask:0xf bank_mask:0xf')
    a(f"""
    s_waitcnt lgkmcnt(0)
    v_lshrrev_b32 v{V_O2L}, 16, v{V_O2H}
    """)
    for t in range(4):
        for i in range(4):
            a(f'v_dot2c_f32_bf16_dpp v{YB+2*i}, v{V_O2L}, v{W+64+4*t+i} row_newbcast:{t} row_mask:0xf bank_mask:0xf')
            a(f'v_dot2c_f32_bf16_dpp v{YB+2*i+1}, v{V_O2H}, v{W+64+4*t+i} row_newbcast:{t} row_mask:0xf bank_mask:0xf')
    reduce_g(YB)
    a(f"""
    s_mul_i32 s{S_T}, s{S_WAVE}, 2560
    v_lshlrev_b32 v{T0}, 5, v{V_LANE}
    v_add_u32 v{T0}, s{S_T}, v{T0}
    ds_write_b128 v{T0}, v[{YA}:{YA+3}] offset:{L_YP}
    ds_write_b128 v{T0}, v[{YA+4}:{YA+7}] offset:{L_YP+16}
    v_lshlrev_b32 v{T0+1}, 5, v{V_C}
    v_lshl_add_u32 v{T0+1}, v{V_G}, 3, v{T0+1}
    v_add_u32 v{T0+1}, s{S_T}, v{T0+1}
    ds_write_b64 v{T0+1}, v[{YB}:{YB+1}] offset:{L_YP+2048}
    s_waitcnt lgkmcnt(0)
    s_barrier
    s_cmp_ge_u32 s{S_WAVE}, 3
    s_cbranch_scc1 L_noy
    v_cmp_gt_u32 vcc, 160, v0
    s_and_saveexec_b64 s[{S_EX}:{S_EX+1}], vcc
    s_cbranch_execz L_noy_restore
    v_lshlrev_b32 v{T0}, 4, v0
    """)
    for w in range(8): a(f'ds_read_b128 v[{RING+4*w}:{RING+4*w+3}], v{T0} offset:{L_YP + 2560*w}')
    a('s_waitcnt lgkmcnt(0)')
    for w in range(1, 8):
        for i in range(4): a(f'v_add_f32 v{RING+i}, v{RING+i}, v{RING+4*w+i}')
    a(f'v_mov_b32 v{T0+1}, 0x7fc00000')
    for i in range(4):
        a(f'v_cmp_u_f32 vcc, v{RING+i}, v{RING+i}')
        a(f'v_cndmask_b32 v{RING+i}, v{RING+i}, v{T0+1}, vcc')
    a(f"""
    s_and_b32 s{S_T}, s2, 1
    s_lshl_b32 s{S_T}, s{S_T}, 7
    s_lshr_b32 s{S_T2}, s2, 1
    s_add_u32 s{S_T}, s{S_T}, s{S_T2}
    s_lshl_b32 s{S_T}, s{S_T}, 6
    v_lshrrev_b32 v{T0+2}, 2, v0
    v_lshlrev_b32 v{T0+2}, 14, v{T0+2}
    v_and_b32 v{T0+3}, 3, v0
    v_lshl_add_u32 v{T0+2}, v{T0+3}, 4, v{T0+2}
    v_add_u32 v{T0+2}, s{S_T}, v{T0+2}
    global_store_dwordx4 v{T0+2}, v[{RING}:{RING+3}], s[{S_Y}:{S_Y+1}] sc1
    L_noy_restore:
    s_mov_b64 exec, -1
    L_noy:
    """)
    stamp()
    a(f"""
    s_cmp_ge_u32 s{S_RED}, {NRED}
    s_cbranch_scc1 L_fin
    s_lshl_b32 s{S_T}, s{S_RED}, 14
    v_lshlrev_b32 v{T0}, 4, v0
    v_add_u32 v{T0}, s{S_T}, v{T0}
    v_add_u32 v{T0+1}, 8192, v{T0}
    s_lshl_b32 s{S_T}, s{S_RED}, 5
    v_lshlrev_b32 v{T0+2}, 1, v{V_C}
    v_add_u32 v{T0+2}, s{S_T}, v{T0+2}
    buffer_load_ushort v{V_XR}, v{T0+2}, {srd(R_X)}, 0 offen
    s_mov_b32 s{S_CNT}, 0
    L_poll1:
    global_load_dwordx4 v[{RING}:{RING+3}], v{T0}, s[{S_Y}:{S_Y+1}] sc1
    s_waitcnt vmcnt(0)
    v_cmp_eq_u32 vcc, -1, v{RING}
    v_cmp_eq_u32 s[{S_EX}:{S_EX+1}], -1, v{RING+1}
    s_or_b64 vcc, vcc, s[{S_EX}:{S_EX+1}]
    v_cmp_eq_u32 s[{S_EX}:{S_EX+1}], -1, v{RING+2}
    s_or_b64 vcc, vcc, s[{S_EX}:{S_EX+1}]
    v_cmp_eq_u32 s[{S_EX}:{S_EX+1}], -1, v{RING+3}
    s_or_b64 vcc, vcc, s[{S_EX}:{S_EX+1}]
    s_cbranch_scc0 L_poll2
    s_add_u32 s{S_CNT}, s{S_CNT}, 1
    s_cmp_ge_u32 s{S_CNT}, s{S_LIM}
    s_cbranch_scc1 L_poll2
    s_sleep 2
    s_branch L_poll1
    L_poll2:
    global_load_dwordx4 v[{RING+4}:{RING+7}], v{T0+1}, s[{S_Y}:{S_Y+1}] sc1
    s_waitcnt vmcnt(0)
    v_cmp_eq_u32 vcc, -1, v{RING+4}
    v_cmp_eq_u32 s[{S_EX}:{S_EX+1}], -1, v{RING+5}
    s_or_b64 vcc, vcc, s[{S_EX}:{S_EX+1}]
    v_cmp_eq_u32 s[{S_EX}:{S_EX+1}], -1, v{RING+6}
    s_or_b64 vcc, vcc, s[{S_EX}:{S_EX+1}]
    v_cmp_eq_u32 s[{S_EX}:{S_EX+1}], -1, v{RING+7}
    s_or_b64 vcc, vcc, s[{S_EX}:{S_EX+1}]
    s_cbranch_scc0 L_poll3
    s_add_u32 s{S_CNT}, s{S_CNT}, 1
    s_cmp_ge_u32 s{S_CNT}, s{S_LIM}
    s_cbranch_scc1 L_poll3
    s_sleep 2
    s_branch L_poll2
    L_poll3:
    """)
    for i in range(4): a(f'v_add_f32 v{RING+i}, v{RING+i}, v{RING+4+i}')
    for rot in (4, 8):
        for i in range(4): a(f'v_add_f32_dpp v{RING+i}, v{RING+i}, v{RING+i} row_ror:{rot} row_mask:0xf bank_mask:0xf')
    for i in range(4): a(f'v_mov_b32 v{RING+4+i}, v{RING+i}')
    for i in range(4): a(f'v_permlane16_swap_b32 v{RING+4+i}, v{RING+i}')
    for i in range(4): a(f'v_add_f32 v{RING+i}, v{RING+i}, v{RING+4+i}')
    for i in range(4): a(f'v_mov_b32 v{RING+4+i}, v{RING+i}')
    for i in range(4): a(f'v_permlane32_swap_b32 v{RING+4+i}, v{RING+i}')
    for i in range(4): a(f'v_add_f32 v{RING+i}, v{RING+i}, v{RING+4+i}')
    a(f"""
    s_lshl_b32 s{S_T}, s{S_WAVE}, 6
    v_and_b32 v{T0}, 3, v{V_LANE}
    v_lshlrev_b32 v{T0}, 4, v{T0}
    v_add_u32 v{T0}, s{S_T}, v{T0}
    ds_write_b128 v{T0}, v[{RING}:{RING+3}] offset:{L_RED}
    s_waitcnt lgkmcnt(0)
    s_barrier
    s_cmp_lg_u32 s{S_WAVE}, 0
    s_cbranch_scc1 L_fin
    v_lshlrev_b32 v{T0}, 2, v{V_C}
    """)
    for w in range(8): a(f'ds_read_b32 v{A0+w}, v{T0} offset:{L_RED + 64*w}')
    a('s_waitcnt lgkmcnt(0)')
    for w in range(1, 8): a(f'v_add_f32 v{A0}, v{A0}, v{A0+w}')
    a(f"""
    v_lshlrev_b32 v{V_XR}, 16, v{V_XR}
    v_add_f32 v{A0}, v{A0}, v{V_XR}
    v_cvt_pk_bf16_f32 v{A0}, v{A0}, v{A0}
    s_mov_b32 s{R_X}, s{S_OUT}
    s_mov_b32 s{R_X+1}, s{S_OUT+1}
    s_mov_b64 exec, 0xffff
    buffer_store_short v{A0}, v{T0+2}, {srd(R_X)}, 0 offen
    s_mov_b64 exec, -1
    L_fin:
    """)
    if stamps:
        stamp()
        a('s_waitcnt lgkmcnt(0)')
        n = nst[0]
        for j in range(n):
            a(f'v_mov_b32 v{RING+2*j}, s{S_ST+2*j}')
            a(f'v_mov_b32 v{RING+2*j+1}, s{S_ST+2*j+1}')
        a(f"""
        s_lshl_b32 s{S_T}, s2, 3
        s_add_u32 s{S_T}, s{S_T}, s{S_WAVE}
        s_lshl_b32 s{S_T}, s{S_T}, 6
        s_add_u32 s{S_T}, s{S_T}, {WS_STAMP}
        v_mov_b32 v{T0}, s{S_T}
        s_mov_b64 exec, 1
        """)
        for j in range(n): a(f'global_store_dwordx2 v{T0}, v[{RING+2*j}:{RING+2*j+1}], s[{S_WS}:{S_WS+1}] offset:{8*j}')
    a("""
    L_end:
    s_endpgm
    """)
    lines = hazard.fix(a.lines, verbose=True)
    body = '\n'.join(lines) + '\n'
    return kernel_file([(NAME + '_kernel', body, 256, 102, 256)], [f'; @launch grid=(256,1,1) block=(512,1,1) lds={LDS_SIZE}'])

if __name__ == '__main__':
    out = sys.argv[1]
    opt = dict(kv.split('=') for kv in sys.argv[2:])
    opt = {k: int(v) for k, v in opt.items()}
    open(out, 'w').write(gen(opt))
```

```python
import sys
from asmlib import *
import hazard

LOG2E = 0x3fb8aa3b
SCALE = 0x3db504f3
INV640 = 0x3acccccd
EPS = 0x3727c5ac
LCG_A, LCG_C = 0x9E3779B1, 0x7F4A7C15

L_P1 = 0
L_P2 = 4096
L_ML = 12288
L_OB = 12416
L_O = 12800
L_X = 16896
BLK = 1056
L_WT = 18432
WTW = 6 * BLK
LDS_SIZE = L_WT + 5 * WTW
WS_X1 = 0x1000
WS_X2 = 0x50000
WS_Y = 0x90000
WS_STAMP = 0x8000000

class G(Asm):
    def __init__(self):
        super().__init__()
        self.vm = []
    def vop(self, text, tag):
        self(text); self.vm.append(tag)
        assert len(self.vm) <= 63, len(self.vm)
    def vwait(self, tag):
        if tag not in self.vm: return
        idx = len(self.vm) - 1 - self.vm[::-1].index(tag)
        n = len(self.vm) - 1 - idx
        self(f's_waitcnt vmcnt({n})')
        self.vm = self.vm[idx + 1:]

V_LANE, V_L16, V_C, V_G = 1, 2, 3, 4
V_TB, V_MASK = 5, 6
V_T1, V_WO = 7, 8
T0 = 10
A0 = 16
V_SA, V_SB = 32, 33
V_PLA, V_PHA, V_PLB, V_PHB = 34, 35, 36, 37
XL, XH = 38, 43
OACC = 48
QF = 56
V_YB = 60
V_XR = 62
RING = 64
T1R = 128
T2R = 148
WT = 172
W2T = 188
POLL = 196
V_PA = 204
S_WG, S_WAVE = 2, 3
S_X, S_K, S_V, S_WQ, S_WO, S_W1, S_W3, S_W2, S_OUT, S_DBG, S_WS = 4, 6, 8, 10, 12, 16, 18, 20, 22, 24, 26
S_H, S_J, S_T, S_T2 = 28, 29, 30, 31
R_K, R_V, R_T, R_WO, R_W2, R_X = 32, 36, 40, 44, 48, 52
S_TAG = 56
S_TB = 57
S_SEL1, S_SEL2 = 61, 62
S_T3 = 63
M_B1, M_B0 = 64, 66
S_EX = 68
S_CG, S_FV = 70, 71
S_4K = 72
S_X1, S_X2, S_Y = 80, 82, 84
S_CNT, S_LIM = 86, 87
S_STEP, S_RS2 = 88, 89
S_40K = 57
S_ST = 90

def srd(r): return f's[{r}:{r+3}]'

def gen(opt):
    a = G()
    nt = ' nt' if opt.get('nt', 1) else ''
    ntw = ' nt' if opt.get('ntw', 1) else ''
    stamps = opt.get('stamps', 0)
    kpre = opt.get('kpre', 4)
    kmid = opt.get('kmid', 4)
    skip = opt.get('skip', 0)
    S = opt.get('ring', 16)
    RSLOT = [RING + 4*i for i in range(16)] + [208 + 4*i for i in range(12)]
    STV = 64
    nst = [0]
    def streg(j): return [90, 4, 6, 8, 10, 12, 14, 16, 18, 20, 92, 94][j]
    def stamp():
        if stamps:
            j = nst[0]; nst[0] += 1
            r = streg(j)
            a(f's_memrealtime s[{r}:{r+1}]')
    DPPM = 'row_mask:0xf bank_mask:0xf'
    def allred_multi(vs, tmps, ops):
        for pat in ('quad_perm:[1,0,3,2]', 'quad_perm:[2,3,0,1]', 'row_half_mirror', 'row_mirror'):
            for v, op in zip(vs, ops): a(f'{op}_dpp v{v}, v{v}, v{v} {pat} {DPPM}')
        rows_multi(vs, tmps, ops, (16, 32))
    def rows_multi(vs, tmps, ops, which):
        for sw in which:
            for v, t in zip(vs, tmps): a(f'v_mov_b32 v{t}, v{v}')
            for v, t in zip(vs, tmps): a(f'v_permlane{sw}_swap_b32 v{t}, v{v}')
            for v, t, op in zip(vs, tmps, ops): a(f'{op} v{v}, v{v}, v{t}')
    def red8(v, op):
        for pat in ('quad_perm:[1,0,3,2]', 'quad_perm:[2,3,0,1]', 'row_half_mirror'):
            a(f'{op}_dpp v{v}, v{v}, v{v} {pat} {DPPM}')
    def rne(dst, src): a(f'v_cvt_pk_bf16_f32 v{dst}, 0, v{src}')
    def transpose_reduce(dst):
        for i in range(8): a(f'v_add_f32_dpp v{A0+i}, v{A0+i}, v{A0+i} row_mirror row_mask:0xf bank_mask:0x3')
        for i in range(8): a(f'v_add_f32_dpp v{A0+i}, v{A0+i+8}, v{A0+i+8} row_mirror row_mask:0xf bank_mask:0xc')
        for i in range(4): a(f'v_add_f32_dpp v{A0+i}, v{A0+i}, v{A0+i} row_half_mirror row_mask:0xf bank_mask:0x5')
        for i in range(4): a(f'v_add_f32_dpp v{A0+i}, v{A0+i+4}, v{A0+i+4} row_half_mirror row_mask:0xf bank_mask:0xa')
        for i in range(4): a(f'v_add_f32_dpp v{A0+i}, v{A0+i}, v{A0+i} quad_perm:[2,3,0,1] {DPPM}')
        a(f'v_cndmask_b32 v{A0}, v{A0}, v{A0+2}, s[{M_B1}:{M_B1+1}]')
        a(f'v_cndmask_b32 v{A0+1}, v{A0+1}, v{A0+3}, s[{M_B1}:{M_B1+1}]')
        for i in range(2): a(f'v_add_f32_dpp v{A0+i}, v{A0+i}, v{A0+i} quad_perm:[1,0,3,2] {DPPM}')
        a(f'v_cndmask_b32 v{dst}, v{A0}, v{A0+1}, s[{M_B0}:{M_B0+1}]')
    def reduce_g(base):
        for i in range(4): a(f'v_permlane32_swap_b32 v{base+i}, v{base+i+4}')
        for i in range(4): a(f'v_add_f32 v{base+i}, v{base+i}, v{base+i+4}')
        a(f'v_permlane16_swap_b32 v{base}, v{base+2}')
        a(f'v_permlane16_swap_b32 v{base+1}, v{base+3}')
        a(f'v_add_f32 v{base}, v{base}, v{base+2}')
        a(f'v_add_f32 v{base+1}, v{base+1}, v{base+3}')
    def tagchk(base, t, t2):
        a(f'v_perm_b32 v{t}, v{base+1}, v{base}, s{S_SEL1}')
        a(f'v_perm_b32 v{t2}, v{base+3}, v{base+2}, s{S_SEL2}')
        a(f'v_or_b32 v{t}, v{t}, v{t2}')
    def mk_srd(r, ptr, off_sgpr, size):
        a(f's_add_u32 s{r}, s{ptr}, s{off_sgpr}')
        a(f's_addc_u32 s{r+1}, s{ptr+1}, 0')
        a(f's_mov_b32 s{r+2}, {size}')
        a(f's_mov_b32 s{r+3}, 0x20000')

    a("""
    s_cmp_ge_u32 s2, 256
    s_cbranch_scc1 L_end
    """)
    stamp()
    a(f"""
    s_load_dwordx16 s[4:19], s[0:1], 0
    s_load_dwordx8 s[20:27], s[0:1], 64
    v_and_b32 v{V_LANE}, 63, v0
    v_lshrrev_b32 v{T0}, 6, v0
    v_lshlrev_b32 v{V_L16}, 4, v{V_LANE}
    v_readfirstlane_b32 s{S_WAVE}, v{T0}
    v_and_b32 v{V_C}, 15, v{V_LANE}
    v_lshrrev_b32 v{V_G}, 4, v{V_LANE}
    s_and_b32 s{S_T}, s2, 7
    s_lshr_b32 s{S_T2}, s2, 3
    s_and_b32 s{S_J}, s{S_T2}, 7
    s_lshr_b32 s{S_T2}, s{S_T2}, 3
    s_lshl_b32 s{S_H}, s{S_T}, 2
    s_add_u32 s{S_H}, s{S_H}, s{S_T2}
    s_mov_b32 s{M_B1}, 0xcccccccc
    s_mov_b32 s{M_B1+1}, 0xcccccccc
    s_mov_b32 s{M_B0}, 0xaaaaaaaa
    s_mov_b32 s{M_B0+1}, 0xaaaaaaaa
    s_mov_b32 s{S_LIM}, 20000
    s_mov_b32 s{S_SEL1}, 0x0c0c0400
    s_mov_b32 s{S_SEL2}, 0x04000c0c
    v_mov_b32 v{V_MASK}, 0xffffff00
    """)
    for k in range(1, 8): a(f's_movk_i32 s{S_4K+k}, {4096*k}')
    a(f"""
    s_add_u32 s{S_T}, s{S_H}, 1
    s_lshr_b32 s{S_T}, s{S_T}, 3
    s_sub_u32 s{S_CG}, s{S_H}, s{S_T}
    s_and_b32 s{S_T}, s{S_H}, 7
    s_cmp_lg_u32 s{S_T}, 7
    s_cselect_b32 s{S_FV}, 1, 0
    s_cmp_lt_u32 s{S_CG}, 27
    s_cselect_b32 s{S_FV}, s{S_FV}, 0
    """)
    a(f"""
    s_mul_i32 s{S_T}, s{S_WAVE}, 20
    s_and_b32 s{S_T2}, s{S_WAVE}, 1
    s_mul_i32 s{S_T2}, s{S_T2}, 40
    s_cmp_lt_u32 s{S_WAVE}, 4
    s_cselect_b32 s{S_T}, s{S_T}, s{S_T2}
    s_movk_i32 s{S_STEP}, 27648
    s_cselect_b32 s{S_STEP}, 32768, s{S_STEP}
    s_cselect_b32 s{S_RS2}, 8, 16
    s_cselect_b32 s{S_T3}, 4, 3
    s_cselect_b32 s{S_EX}, 15, 7
    s_movk_i32 s{S_EX+1}, 3456
    s_cselect_b32 s{S_EX+1}, 8192, s{S_EX+1}
    s_mul_i32 s{S_T2}, s{S_J}, 80
    s_add_u32 s{S_T}, s{S_T}, s{S_T2}
    v_lshrrev_b32 v{T0}, s{S_T3}, v{V_LANE}
    v_and_b32 v{T0+1}, s{S_EX}, v{V_LANE}
    v_mul_lo_u32 v{V_T1}, v{T0}, s{S_EX+1}
    v_lshl_add_u32 v{V_T1}, v{T0+1}, 4, v{V_T1}
    v_add_u32 v{T0}, s{S_T}, v{T0}
    v_lshlrev_b32 v{T0}, 1, v{T0}
    s_mul_i32 s{S_T}, s{S_T}, s{S_EX+1}
    """)
    a(f"""
    s_lshl_b32 s{S_T2}, s{S_H}, 8
    s_lshl_b32 s{S_T3}, s{S_CG}, 7
    s_cmp_lt_u32 s{S_WAVE}, 4
    s_cselect_b32 s{S_T2}, s{S_T2}, s{S_T3}
    s_add_u32 s{S_T}, s{S_T}, s{S_T2}
    s_mul_i32 s{S_T2}, s{S_FV}, {39*3456+128}
    s_cmp_lt_u32 s{S_WAVE}, 4
    s_cselect_b32 s{S_T3}, {19*8192+256}, s{S_T2}
    s_waitcnt lgkmcnt(0)
    s_load_dword s{S_TAG}, s[{S_WS}:{S_WS+1}], 0
    s_cmp_lt_u32 s{S_WAVE}, 6
    s_cselect_b32 s{R_T}, s{S_W1}, s{S_W3}
    s_cselect_b32 s{R_T+1}, s{S_W1+1}, s{S_W3+1}
    s_cmp_lt_u32 s{S_WAVE}, 4
    s_cselect_b32 s{R_T}, s{S_WQ}, s{R_T}
    s_cselect_b32 s{R_T+1}, s{S_WQ+1}, s{R_T+1}
    s_add_u32 s{R_T}, s{R_T}, s{S_T}
    s_addc_u32 s{R_T+1}, s{R_T+1}, 0
    s_mov_b32 s{R_T+2}, s{S_T3}
    s_mov_b32 s{R_T+3}, 0x20000
    s_mov_b32 s{R_X}, s{S_X}
    s_mov_b32 s{R_X+1}, s{S_X+1}
    s_movk_i32 s{R_X+2}, 1280
    s_mov_b32 s{R_X+3}, 0x20000
    """)
    a(f'v_lshlrev_b32 v{T0+1}, 2, v{V_LANE}')
    a.vop(f'buffer_load_dwordx4 v[{A0}:{A0+3}], v{V_L16}, {srd(R_X)}, 0 offen', 'x')
    a.vop(f'buffer_load_dword v{A0+4}, v{T0+1}, {srd(R_X)}, 0 offen offset:1024', 'x')
    a(f's_mov_b32 s{S_T}, 0')
    for t in range(5):
        a.vop(f'buffer_load_dwordx4 v[{T1R+4*t}:{T1R+4*t+3}], v{V_T1}, {srd(R_T)}, s{S_T} offen{ntw}', 't1')
        if t < 4: a(f's_add_u32 s{S_T}, s{S_T}, s{S_STEP}')
    a(f'v_mov_b32 v{XL}, v{T0}')
    for t in range(1, 5): a(f'v_add_u32 v{XL+t}, s{S_RS2}, v{XL+t-1}')
    a(f"""
    s_lshl_b32 s{S_T}, s{S_H}, 6
    s_lshl_b32 s{S_T2}, s{S_J}, 3
    s_add_u32 s{S_T}, s{S_T}, s{S_T2}
    s_add_u32 s{S_T}, s{S_T}, s{S_WAVE}
    s_lshl_b32 s{S_T}, s{S_T}, 15
    """)
    mk_srd(R_K, S_K, S_T, 32768)
    mk_srd(R_V, S_V, S_T, 32768)
    a(f"""
    s_mul_i32 s{S_T}, s{S_H}, {128*1280}
    s_mul_i32 s{S_T2}, s{S_J}, 160
    s_lshl_b32 s{S_T3}, s{S_WAVE}, 5
    s_add_u32 s{S_T2}, s{S_T2}, s{S_T3}
    s_cmp_lt_u32 s{S_WAVE}, 5
    s_cselect_b32 s{S_T2}, s{S_T2}, 0
    s_cselect_b32 s{S_T3}, 1, 0
    s_add_u32 s{S_T}, s{S_T}, s{S_T2}
    s_mul_i32 s{S_EX}, s{S_T3}, {127*1280+32}
    """)
    mk_srd(R_WO, S_WO, S_T, f's{S_EX}')
    a(f"""
    s_mul_i32 s{S_T}, s{S_CG}, {64*1280}
    s_add_u32 s{S_T}, s{S_T}, s{S_T2}
    s_mul_i32 s{S_T3}, s{S_T3}, s{S_FV}
    s_mul_i32 s{S_T}, s{S_T}, s{S_T3}
    s_mul_i32 s{S_EX}, s{S_T3}, {63*1280+32}
    """)
    mk_srd(R_W2, S_W2, S_T, f's{S_EX}')
    a(f"""
    v_lshrrev_b32 v{V_WO}, 1, v{V_LANE}
    v_mul_u32_u24 v{V_WO}, 1280, v{V_WO}
    v_and_b32 v{T0+1}, 1, v{V_LANE}
    v_lshl_add_u32 v{V_WO}, v{T0+1}, 4, v{V_WO}
    s_mov_b32 s{S_40K}, 40960
    s_mov_b32 s{S_40K+1}, 81920
    s_mov_b32 s{S_40K+2}, 122880
    s_lshl_b32 s{S_T}, s{S_H}, 13
    s_add_u32 s{S_T}, s{S_T}, {WS_X1}
    s_add_u32 s{S_X1}, s{S_WS}, s{S_T}
    s_addc_u32 s{S_X1+1}, s{S_WS+1}, 0
    s_lshl_b32 s{S_T}, s{S_H}, 13
    s_add_u32 s{S_T}, s{S_T}, {WS_X2}
    s_add_u32 s{S_X2}, s{S_WS}, s{S_T}
    s_addc_u32 s{S_X2+1}, s{S_WS+1}, 0
    s_mul_i32 s{S_T}, s{S_J}, {5*2048}
    s_add_u32 s{S_T}, s{S_T}, {WS_Y}
    s_add_u32 s{S_Y}, s{S_WS}, s{S_T}
    s_addc_u32 s{S_Y+1}, s{S_WS+1}, 0
    """)
    def kv_load(i):
        r = R_K if i < 32 else R_V
        t = i % 32
        so = '0' if t < 4 else f's{S_4K + (t >> 2)}'
        slot = RSLOT[i % S]
        a.vop(f'buffer_load_dwordx4 v[{slot}:{slot+3}], v{V_L16}, {srd(r)}, {so} offen offset:{(t&3)*1024}{nt}', f'kv{i}')
    nxt = [0]
    def issue(n):
        for _ in range(n):
            if nxt[0] < 64:
                kv_load(nxt[0]); nxt[0] += 1

    a.vwait('x')
    a(f"""
    v_lshlrev_b32 v{T0+4}, 2, v{V_LANE}
    ds_write_b128 v{V_L16}, v[{A0}:{A0+3}] offset:{L_X}
    ds_write_b32 v{T0+4}, v{A0+4} offset:{L_X+1024}
    """)
    for t in range(5): a(f'ds_read_u16 v{A0+8+t}, v{XL+t} offset:{L_X}')
    a(f"""
    s_mul_i32 s{S_T}, s{S_J}, 160
    s_lshl_b32 s{S_T2}, s{S_WAVE}, 5
    s_add_u32 s{S_T}, s{S_T}, s{S_T2}
    v_and_b32 v{T0+5}, 3, v{V_LANE}
    v_lshl_add_u32 v{T0+5}, v{T0+5}, 3, s{S_T}
    ds_read_b64 v[{V_XR}:{V_XR+1}], v{T0+5} offset:{L_X}
    """)
    SUM, SQ = A0+13, A0+14
    a(f'v_mov_b32 v{T0+2}, 0x3f803f80')
    a(f'v_dot2_f32_bf16 v{SUM}, v{A0}, v{T0+2}, 0')
    a(f'v_dot2_f32_bf16 v{SQ}, v{A0}, v{A0}, 0')
    for i in range(1, 5):
        a(f'v_dot2_f32_bf16 v{SUM}, v{A0+i}, v{T0+2}, v{SUM}')
        a(f'v_dot2_f32_bf16 v{SQ}, v{A0+i}, v{A0+i}, v{SQ}')
    allred_multi([SUM, SQ], [T0+2, T0+3], ['v_add_f32', 'v_add_f32'])
    a(f"""
    v_mul_f32 v{SUM}, {INV640}, v{SUM}
    v_mul_f32 v{SQ}, {INV640}, v{SQ}
    v_fma_f32 v{SQ}, -v{SUM}, v{SUM}, v{SQ}
    """)
    rne(SUM, SUM); rne(SQ, SQ)
    a(f'v_add_f32 v{SQ}, {EPS}, v{SQ}')
    rne(SQ, SQ)
    a(f'v_sqrt_f32 v{SQ}, v{SQ}')
    rne(SQ, SQ)
    a(f'v_rcp_f32 v{SQ}, v{SQ}')
    a('s_waitcnt lgkmcnt(0)')
    for t in range(5): a(f'v_lshlrev_b32 v{A0+8+t}, 16, v{A0+8+t}')
    for t in range(5): a(f'v_sub_f32 v{A0+8+t}, v{A0+8+t}, v{SUM}')
    for t in range(5): rne(A0+8+t, A0+8+t)
    for t in range(5): a(f'v_mul_f32 v{A0+8+t}, v{A0+8+t}, v{SQ}')
    for t in range(5): rne(XH+t, A0+8+t)
    for t in range(5): a(f'v_lshrrev_b32 v{XL+t}, 16, v{XH+t}')
    for i in range(8): a(f'v_mov_b32 v{OACC+i}, 0')
    issue(kpre)
    stamp()
    a(f"""
    s_waitcnt lgkmcnt(0)
    s_mul_i32 s{S_TAG}, s{S_TAG}, {LCG_A}
    s_add_u32 s{S_TAG}, s{S_TAG}, {LCG_C}
    v_and_b32 v{T0}, 3, v{V_LANE}
    v_lshlrev_b32 v{T0}, 3, v{T0}
    v_lshrrev_b32 v{V_TB}, v{T0}, s{S_TAG}
    v_and_b32 v{V_TB}, 0xff, v{V_TB}
    """)
    for t in range(5):
        if t == 0: a.vwait('t1')
        for i in range(4):
            a(f'v_dot2c_f32_bf16 v{OACC+2*i}, v{XL+t}, v{T1R+4*t+i}')
            a(f'v_dot2c_f32_bf16 v{OACC+2*i+1}, v{XH+t}, v{T1R+4*t+i}')
    reduce_g(OACC)
    a(f"""
    s_lshl_b32 s{S_T}, s{S_WAVE}, 9
    v_lshlrev_b32 v{T0}, 5, v{V_C}
    v_lshl_add_u32 v{T0}, v{V_G}, 3, v{T0}
    v_add_u32 v{T0}, s{S_T}, v{T0}
    ds_write_b64 v{T0}, v[{OACC}:{OACC+1}] offset:{L_P1}
    s_waitcnt lgkmcnt(0)
    s_barrier
    s_cmp_ge_u32 s{S_WAVE}, 4
    s_cbranch_scc1 L_nopub1
    s_lshl_b32 s{S_T}, s{S_WAVE}, 8
    s_sub_u32 s{S_T2}, s{S_WAVE}, 2
    s_lshl_b32 s{S_T2}, s{S_T2}, 10
    s_add_u32 s{S_T2}, s{S_T2}, 2048
    s_cmp_lt_u32 s{S_WAVE}, 2
    s_cselect_b32 s{S_T}, s{S_T}, s{S_T2}
    s_movk_i32 s{S_T2}, 256
    s_cselect_b32 s{S_T2}, 512, s{S_T2}
    v_lshl_add_u32 v{T0}, v{V_LANE}, 2, s{S_T}
    v_add_u32 v{T0+1}, s{S_T2}, v{T0}
    v_add_u32 v{T0+2}, s{S_T2}, v{T0+1}
    v_add_u32 v{T0+3}, s{S_T2}, v{T0+2}
    ds_read_b32 v{A0}, v{T0} offset:{L_P1}
    ds_read_b32 v{A0+1}, v{T0+1} offset:{L_P1}
    ds_read_b32 v{A0+2}, v{T0+2} offset:{L_P1}
    ds_read_b32 v{A0+3}, v{T0+3} offset:{L_P1}
    s_lshl_b32 s{S_T}, s{S_J}, 10
    v_lshl_add_u32 v{T0}, v0, 2, s{S_T}
    s_waitcnt lgkmcnt(0)
    v_add_f32 v{A0}, v{A0}, v{A0+1}
    v_add_f32 v{A0+2}, v{A0+2}, v{A0+3}
    v_add_f32 v{A0}, v{A0}, v{A0+2}
    v_and_or_b32 v{A0}, v{A0}, v{V_MASK}, v{V_TB}
    global_store_dword v{T0}, v{A0}, s[{S_X1}:{S_X1+1}] sc1
    L_nopub1:
    """)
    stamp()
    a(f"""
    s_lshl_b32 s{S_T}, s{S_WAVE}, 10
    v_add_u32 v{V_PA}, s{S_T}, v{V_L16}
    """)
    issue(opt.get('k2', 4))
    if opt.get('kw', -1) >= 0:
        keep = list(a.vm); a.vwait(f"kv{opt['kw']}")
    a.vop(f'global_load_dwordx4 v[{POLL}:{POLL+3}], v{V_PA}, s[{S_X1}:{S_X1+1}] sc1', 'p1')
    issue(opt.get('k3', 4))
    a.vwait('p1')
    a(f"""
    s_mov_b32 s{S_CNT}, 0
    L_p1_chk:
    """)
    tagchk(POLL, T0, T0+1)
    a(f"""
    v_cmp_ne_u32 vcc, s{S_TAG}, v{T0}
    s_cbranch_vccz L_p1_ok
    s_add_u32 s{S_CNT}, s{S_CNT}, 1
    s_cmp_ge_u32 s{S_CNT}, s{S_LIM}
    s_cbranch_scc1 L_p1_ok
    global_load_dwordx4 v[{POLL}:{POLL+3}], v{V_PA}, s[{S_X1}:{S_X1+1}] sc1
    s_waitcnt vmcnt(0)
    s_branch L_p1_chk
    L_p1_ok:
    v_and_b32 v{POLL}, v{POLL}, v{V_MASK}
    v_and_b32 v{POLL+1}, v{POLL+1}, v{V_MASK}
    v_and_b32 v{POLL+2}, v{POLL+2}, v{V_MASK}
    v_and_b32 v{POLL+3}, v{POLL+3}, v{V_MASK}
    ds_write_b128 v{V_PA}, v[{POLL}:{POLL+3}] offset:{L_P2}
    s_waitcnt lgkmcnt(0)
    s_barrier
    v_lshlrev_b32 v{T0}, 3, v{V_LANE}
    """)
    for s in range(8): a(f'ds_read_b64 v[{A0+2*s}:{A0+2*s+1}], v{T0} offset:{L_P2 + 1024*s}')
    a(f"""
    v_lshlrev_b32 v{T0+1}, 4, v{V_C}
    s_waitcnt lgkmcnt(0)
    """)
    for st in (8, 4, 2):
        for i in range(st): a(f'v_add_f32 v{A0+i}, v{A0+i}, v{A0+st+i}')
    a(f"""
    v_cvt_pk_bf16_f32 v{A0}, v{A0}, v{A0+1}
    v_add_u32 v{T0+2}, 4, v{T0+1}
    v_add_u32 v{T0+3}, 8, v{T0+1}
    v_add_u32 v{T0+4}, 12, v{T0+1}
    ds_bpermute_b32 v{QF}, v{T0+1}, v{A0}
    ds_bpermute_b32 v{QF+1}, v{T0+2}, v{A0}
    ds_bpermute_b32 v{QF+2}, v{T0+3}, v{A0}
    ds_bpermute_b32 v{QF+3}, v{T0+4}, v{A0}
    v_mov_b32 v{V_YB}, 0
    s_waitcnt lgkmcnt(0)
    """)
    stamp()
    done = [0]
    def k_step(i):
        a.vwait(f'kv{i}')
        slot = RSLOT[i % S]; acc = A0 + (i % 16)
        a(f'v_dot2_f32_bf16 v{acc}, v{slot}, v{QF}, 0')
        for j in range(1, 4): a(f'v_dot2_f32_bf16 v{acc}, v{slot+j}, v{QF+j}, v{acc}')
        if i >= skip: issue(1)
        t2at = opt.get('t2at', 2)
        if t2at <= i < t2at + 6:
            t = i - t2at
            if t < 4:
                so = '0' if t == 0 else f's{S_40K+t-1}'
                a.vop(f'buffer_load_dwordx4 v[{T2R+4*t}:{T2R+4*t+3}], v{V_WO}, {srd(R_WO)}, {so} offen{ntw}', 't2')
            else:
                so = '0' if t == 4 else f's{S_40K}'
                a.vop(f'buffer_load_dwordx4 v[{T2R+4*t}:{T2R+4*t+3}], v{V_WO}, {srd(R_W2)}, {so} offen{ntw}', 't2')
    for i in range(16): k_step(i)
    transpose_reduce(V_SA)
    for i in range(16, 32): k_step(i)
    transpose_reduce(V_SB)
    for s in (V_SA, V_SB):
        rne(s, s)
        a(f'v_mul_f32 v{s}, {SCALE}, v{s}')
        rne(s, s)
    a(f'v_max_f32 v{T0}, v{V_SA}, v{V_SB}')
    allred_multi([T0], [T0+1], ['v_max_f32'])
    a(f"""
    v_sub_f32 v{V_SA}, v{V_SA}, v{T0}
    v_sub_f32 v{V_SB}, v{V_SB}, v{T0}
    v_mul_f32 v{V_SA}, {LOG2E}, v{V_SA}
    v_mul_f32 v{V_SB}, {LOG2E}, v{V_SB}
    v_exp_f32 v{V_SA}, v{V_SA}
    v_exp_f32 v{V_SB}, v{V_SB}
    v_add_f32 v{T0+1}, v{V_SA}, v{V_SB}
    """)
    rne(V_PHA, V_SA); rne(V_PHB, V_SB)
    a(f'v_lshrrev_b32 v{V_PLA}, 16, v{V_PHA}')
    a(f'v_lshrrev_b32 v{V_PLB}, 16, v{V_PHB}')
    for i in range(8): a(f'v_mov_b32 v{OACC+i}, 0')
    allred_multi([T0+1], [T0+2], ['v_add_f32'])
    a(f"""
    s_lshl_b32 s{S_T}, s{S_WAVE}, 3
    v_mov_b32 v{T0+2}, s{S_T}
    ds_write_b64 v{T0+2}, v[{T0}:{T0+1}] offset:{L_ML}
    """)
    stamp()
    a.vwait('t2')
    a(f"""
    s_cmp_ge_u32 s{S_WAVE}, 5
    s_cbranch_scc1 L_noffn
    s_mul_i32 s{S_T}, s{S_WAVE}, {WTW}
    v_lshl_add_u32 v{T0+1}, v{V_LANE}, 4, s{S_T}
    """)
    for t in range(6): a(f'ds_write_b128 v{T0+1}, v[{T2R+4*t}:{T2R+4*t+3}] offset:{L_WT + BLK*t}')
    a(f"""
    v_lshlrev_b32 v{T0}, 3, v{V_LANE}
    v_lshl_add_u32 v{T0+1}, v{V_C}, 1, s{S_T}
    v_mul_u32_u24 v{T0+2}, {BLK}, v{V_G}
    v_add_u32 v{T0+2}, v{T0+2}, v{T0+1}
    v_lshrrev_b32 v{T0+3}, 1, v{V_G}
    v_mul_u32_u24 v{T0+3}, {BLK}, v{T0+3}
    v_add_u32 v{T0+3}, v{T0+3}, v{T0+1}
    v_and_b32 v{T0+4}, 1, v{V_G}
    v_lshl_add_u32 v{T0+3}, v{T0+4}, 9, v{T0+3}
    """)
    for s_ in range(8): a(f'ds_read_b64 v[{A0+2*s_}:{A0+2*s_+1}], v{T0} offset:{L_P2 + 512 + 1024*s_}')
    for m in range(8):
        a(f'ds_read_u16 v{W2T+m}, v{T0+3} offset:{L_WT + 4*BLK + 2*m*32}')
        a(f'ds_read_u16 v{T1R+16-16+m}, v{T0+3} offset:{L_WT + 4*BLK + (2*m+1)*32}')
    a('s_waitcnt lgkmcnt(0)')
    for m in range(8): a(f'v_lshl_or_b32 v{W2T+m}, v{T1R+m}, 16, v{W2T+m}')
    for st in (8, 4, 2):
        for i in range(st): a(f'v_add_f32 v{A0+i}, v{A0+i}, v{A0+st+i}')
    for m in range(16):
        a(f'ds_read_u16 v{WT+m}, v{T0+2} offset:{L_WT + 2*m*32}')
        a(f'ds_read_u16 v{T1R+m}, v{T0+2} offset:{L_WT + (2*m+1)*32}')
    rne(A0, A0); rne(A0+1, A0+1)
    a(f"""
    v_mov_b32 v{A0+2}, v{A0}
    v_mov_b32 v{A0+3}, v{A0+1}
    v_permlane32_swap_b32 v{A0+2}, v{A0}
    v_permlane32_swap_b32 v{A0+3}, v{A0+1}
    """)
    for k in range(2): a(f'v_mul_f32 v{A0+4+k}, {LOG2E ^ 0x80000000}, v{A0+2+k}')
    for k in range(2): a(f'v_exp_f32 v{A0+4+k}, v{A0+4+k}')
    for k in range(2): a(f'v_add_f32 v{A0+4+k}, 1.0, v{A0+4+k}')
    for k in range(2): a(f'v_rcp_f32 v{A0+4+k}, v{A0+4+k}')
    for k in range(2): a(f'v_mul_f32 v{A0+4+k}, v{A0+2+k}, v{A0+4+k}')
    for k in range(2): rne(A0+4+k, A0+4+k)
    for k in range(2): a(f'v_mul_f32 v{A0+4+k}, v{A0+4+k}, v{A0+k}')
    a(f'v_cvt_pk_bf16_f32 v{A0+4}, v{A0+4}, v{A0+5}')
    a(f'v_lshlrev_b32 v{T0+1}, 5, v{V_G}')
    for k in range(8): a(f'v_add_u32 v{A0+8+k}, {4*k}, v{T0+1}')
    for k in range(8): a(f'ds_bpermute_b32 v{A0+8+k}, v{A0+8+k}, v{A0+4}')
    a('s_waitcnt lgkmcnt(0)')
    for m in range(16): a(f'v_lshl_or_b32 v{WT+m}, v{T1R+m}, 16, v{WT+m}')
    for k in range(8): a(f'v_dot2c_f32_bf16 v{V_YB}, v{A0+8+k}, v{W2T+k}')
    a('L_noffn:')
    for i in range(32, 64):
        a.vwait(f'kv{i}')
        slot = RSLOT[i % S]
        lo, hi = (V_PLA, V_PHA) if i < 48 else (V_PLB, V_PHB)
        ln = i % 16
        for j in range(4):
            a(f'v_dot2c_f32_bf16_dpp v{OACC+2*j}, v{lo}, v{slot+j} row_newbcast:{ln} {DPPM}')
            a(f'v_dot2c_f32_bf16_dpp v{OACC+2*j+1}, v{hi}, v{slot+j} row_newbcast:{ln} {DPPM}')
        issue(1)
    stamp()
    reduce_g(OACC)
    a(f"""
    s_lshl_b32 s{S_T}, s{S_WAVE}, 9
    v_lshlrev_b32 v{T0}, 5, v{V_C}
    v_lshl_add_u32 v{T0}, v{V_G}, 3, v{T0}
    v_add_u32 v{T0}, s{S_T}, v{T0}
    ds_write_b64 v{T0}, v[{OACC}:{OACC+1}] offset:{L_O}
    v_and_b32 v{T0+1}, 7, v{V_LANE}
    v_lshlrev_b32 v{T0+1}, 3, v{T0+1}
    v_lshlrev_b32 v{T0+2}, 2, v0
    s_waitcnt lgkmcnt(0)
    s_barrier
    s_cmp_ge_u32 s{S_WAVE}, 2
    s_cbranch_scc1 L_nopub2
    ds_read_b64 v[{T0+4}:{T0+5}], v{T0+1} offset:{L_ML}
    """)
    for w in range(8): a(f'ds_read_b32 v{A0+w}, v{T0+2} offset:{L_O + 512*w}')
    a(f"""
    s_lshl_b32 s{S_T}, s{S_J}, 10
    v_add_u32 v{T0+2}, s{S_T}, v{T0+2}
    s_waitcnt lgkmcnt(8)
    v_mov_b32 v{T0}, v{T0+4}
    """)
    red8(T0, 'v_max_f32')
    a(f"""
    v_sub_f32 v{T0+4}, v{T0+4}, v{T0}
    v_mul_f32 v{T0+4}, {LOG2E}, v{T0+4}
    v_exp_f32 v{T0+4}, v{T0+4}
    s_waitcnt lgkmcnt(0)
    v_mul_f32 v{T0+5}, v{T0+4}, v{T0+5}
    v_mul_f32_dpp v{A0+8}, v{T0+4}, v{A0} row_newbcast:0 {DPPM}
    """)
    for w in range(1, 8):
        a(f'v_fmac_f32_dpp v{A0+8}, v{T0+4}, v{A0+w} row_newbcast:{w} {DPPM}')
    red8(T0+5, 'v_add_f32')
    a(f"""
    v_and_or_b32 v{A0+8}, v{A0+8}, v{V_MASK}, v{V_TB}
    global_store_dword v{T0+2}, v{A0+8}, s[{S_X2}:{S_X2+1}] sc1
    s_cmp_lg_u32 s{S_WAVE}, 0
    s_cbranch_scc1 L_nopub2
    v_cndmask_b32 v{T0}, v{T0}, v{T0+5}, s[{M_B0}:{M_B0+1}]
    v_and_or_b32 v{T0}, v{T0}, v{V_MASK}, v{V_TB}
    s_mov_b64 exec, 15
    global_store_dword v{T0+2}, v{T0}, s[{S_X2}:{S_X2+1}] offset:512 sc1
    s_mov_b64 exec, -1
    L_nopub2:
    """)
    stamp()
    a(f"""
    v_lshrrev_b32 v{T0}, 2, v{V_LANE}
    v_and_b32 v{T0}, 7, v{T0}
    v_lshlrev_b32 v{V_PA+1}, 10, v{T0}
    v_and_b32 v{T0+1}, 3, v{V_LANE}
    v_lshl_add_u32 v{V_PA}, v{T0+1}, 4, v{V_PA+1}
    s_lshl_b32 s{S_T}, s{S_WAVE}, 6
    v_add_u32 v{V_PA}, s{S_T}, v{V_PA}
    s_mov_b32 s{S_CNT}, 0
    L_p2_ld:
    global_load_dwordx4 v[{POLL}:{POLL+3}], v{V_PA}, s[{S_X2}:{S_X2+1}] sc1
    global_load_dwordx4 v[{POLL+4}:{POLL+7}], v{V_PA+1}, s[{S_X2}:{S_X2+1}] offset:512 sc1
    s_waitcnt vmcnt(0)
    """)
    tagchk(POLL, T0, T0+1)
    tagchk(POLL+4, T0+2, T0+3)
    a(f"""
    v_cmp_ne_u32 vcc, s{S_TAG}, v{T0}
    v_cmp_ne_u32 s[{S_EX}:{S_EX+1}], s{S_TAG}, v{T0+2}
    s_or_b64 vcc, vcc, s[{S_EX}:{S_EX+1}]
    s_cbranch_vccz L_p2_ok
    s_add_u32 s{S_CNT}, s{S_CNT}, 1
    s_cmp_lt_u32 s{S_CNT}, s{S_LIM}
    s_cbranch_scc1 L_p2_ld
    L_p2_ok:
    v_and_b32 v{POLL}, v{POLL}, v{V_MASK}
    v_and_b32 v{POLL+1}, v{POLL+1}, v{V_MASK}
    v_and_b32 v{POLL+2}, v{POLL+2}, v{V_MASK}
    v_and_b32 v{POLL+3}, v{POLL+3}, v{V_MASK}
    v_and_b32 v{POLL+5}, v{POLL+5}, v{V_MASK}
    v_and_b32 v{POLL+4}, v{POLL+4}, v{V_MASK}
    v_mov_b32 v{T0}, v{POLL+4}
    """)
    def red_s(vs, tmps, ops):
        for pat in ('row_ror:4', 'row_ror:8'):
            for v, op in zip(vs, ops): a(f'{op}_dpp v{v}, v{v}, v{v} {pat} {DPPM}')
        rows_multi(vs, tmps, ops, (16,))
    red_s([T0], [T0+1], ['v_max_f32'])
    a(f"""
    v_sub_f32 v{POLL+4}, v{POLL+4}, v{T0}
    v_mul_f32 v{POLL+4}, {LOG2E}, v{POLL+4}
    v_exp_f32 v{POLL+4}, v{POLL+4}
    v_mul_f32 v{POLL+5}, v{POLL+4}, v{POLL+5}
    """)
    for k in range(4): a(f'v_mul_f32 v{POLL+k}, v{POLL+4}, v{POLL+k}')
    red_s([POLL+5, POLL, POLL+1, POLL+2, POLL+3], [T0, T0+1, T0+2, T0+3, T0+4], ['v_add_f32'] * 5)
    a(f'v_rcp_f32 v{POLL+5}, v{POLL+5}')
    for k in range(4): a(f'v_mul_f32 v{POLL+k}, v{POLL+5}, v{POLL+k}')
    a(f"""
    v_cvt_pk_bf16_f32 v{POLL}, v{POLL}, v{POLL+1}
    v_cvt_pk_bf16_f32 v{POLL+1}, v{POLL+2}, v{POLL+3}
    s_lshl_b32 s{S_T}, s{S_WAVE}, 5
    v_and_b32 v{T0}, 3, v{V_LANE}
    v_lshl_add_u32 v{T0}, v{T0}, 3, s{S_T}
    s_mov_b64 exec, 15
    ds_write_b64 v{T0}, v[{POLL}:{POLL+1}] offset:{L_OB}
    s_mov_b64 exec, -1
    v_lshlrev_b32 v{T0}, 6, v{V_G}
    s_waitcnt lgkmcnt(0)
    s_barrier
    """)
    stamp()
    a(f"""
    s_cmp_ge_u32 s{S_WAVE}, 5
    s_cbranch_scc1 L_fin
    """)
    for k in range(4): a(f'ds_read_b128 v[{A0+4*k}:{A0+4*k+3}], v{T0} offset:{L_OB + 16*k}')
    a(f"""
    s_lshl_b32 s{S_T}, s{S_WAVE}, 11
    s_lshl_b32 s{S_T2}, s{S_H}, 6
    s_add_u32 s{S_T2}, s{S_T2}, s{S_T}
    v_lshl_add_u32 v{T0+1}, v{V_C}, 2, s{S_T2}
    v_mov_b32 v{T0+2}, 0
    """)
    for k in range(16):
        if k % 4 == 0: a(f's_waitcnt lgkmcnt({3 - k//4})')
        acc = V_YB if k % 2 == 0 else T0+2
        a(f'v_dot2c_f32_bf16 v{acc}, v{A0+k}, v{WT+k}')
    a(f'v_add_f32 v{V_YB}, v{V_YB}, v{T0+2}')
    rows_multi([V_YB], [T0+2], ['v_add_f32'], (16, 32))
    a(f"""
    v_and_or_b32 v{V_YB}, v{V_YB}, v{V_MASK}, v{V_TB}
    s_mov_b64 exec, 0xffff
    global_store_dword v{T0+1}, v{V_YB}, s[{S_Y}:{S_Y+1}] sc1
    s_mov_b64 exec, -1
    """)
    stamp()
    a(f"""
    s_cmp_lg_u32 s{S_H}, 0
    s_cbranch_scc1 L_fin
    v_add_u32 v{V_PA}, s{S_T}, v{V_L16}
    s_mov_b32 s{S_CNT}, 0
    L_p3_ld:
    global_load_dwordx4 v[{POLL}:{POLL+3}], v{V_PA}, s[{S_Y}:{S_Y+1}] sc1
    global_load_dwordx4 v[{POLL+4}:{POLL+7}], v{V_PA}, s[{S_Y}:{S_Y+1}] offset:1024 sc1
    s_waitcnt vmcnt(0)
    """)
    tagchk(POLL, T0, T0+1)
    tagchk(POLL+4, T0+2, T0+3)
    a(f"""
    v_cmp_ne_u32 vcc, s{S_TAG}, v{T0}
    v_cmp_ne_u32 s[{S_EX}:{S_EX+1}], s{S_TAG}, v{T0+2}
    s_or_b64 vcc, vcc, s[{S_EX}:{S_EX+1}]
    s_cbranch_vccz L_p3_ok
    s_add_u32 s{S_CNT}, s{S_CNT}, 1
    s_cmp_lt_u32 s{S_CNT}, s{S_LIM}
    s_cbranch_scc1 L_p3_ld
    L_p3_ok:
    """)
    for k in range(8): a(f'v_and_b32 v{POLL+k}, v{POLL+k}, v{V_MASK}')
    for k in range(4): a(f'v_add_f32 v{POLL+k}, v{POLL+k}, v{POLL+4+k}')
    vs = [POLL+k for k in range(4)]
    for pat in ('row_ror:4', 'row_ror:8'):
        for v in vs: a(f'v_add_f32_dpp v{v}, v{v}, v{v} {pat} {DPPM}')
    rows_multi(vs, [T0, T0+1, T0+2, T0+3], ['v_add_f32'] * 4, (16, 32))
    a(f"""
    v_lshlrev_b32 v{T0}, 16, v{V_XR}
    v_and_b32 v{T0+1}, 0xffff0000, v{V_XR}
    v_lshlrev_b32 v{T0+2}, 16, v{V_XR+1}
    v_and_b32 v{T0+3}, 0xffff0000, v{V_XR+1}
    """)
    for k in range(4): a(f'v_add_f32 v{POLL+k}, v{POLL+k}, v{T0+k}')
    a(f"""
    v_cvt_pk_bf16_f32 v{POLL}, v{POLL}, v{POLL+1}
    v_cvt_pk_bf16_f32 v{POLL+1}, v{POLL+2}, v{POLL+3}
    s_mul_i32 s{S_T}, s{S_J}, 160
    s_lshl_b32 s{S_T2}, s{S_WAVE}, 5
    s_add_u32 s{S_T}, s{S_T}, s{S_T2}
    v_and_b32 v{T0}, 3, v{V_LANE}
    v_lshlrev_b32 v{T0}, 3, v{T0}
    s_mov_b32 s{R_X}, s{S_OUT}
    s_mov_b32 s{R_X+1}, s{S_OUT+1}
    s_mov_b64 exec, 15
    buffer_store_dwordx2 v[{POLL}:{POLL+1}], v{T0}, {srd(R_X)}, s{S_T} offen
    s_mov_b64 exec, -1
    s_or_b32 s{S_T}, s{S_J}, s{S_WAVE}
    s_cmp_lg_u32 s{S_T}, 0
    s_cbranch_scc1 L_fin
    v_mov_b32 v{T0}, 0
    v_mov_b32 v{T0+1}, s{S_TAG}
    s_mov_b64 exec, 1
    global_store_dword v{T0}, v{T0+1}, s[{S_WS}:{S_WS+1}]
    s_mov_b64 exec, -1
    L_fin:
    """)
    if stamps:
        stamp()
        n = nst[0]
        a('s_waitcnt lgkmcnt(0)')
        for j in range(n):
            a(f'v_mov_b32 v{STV+2*j}, s{streg(j)}')
            a(f'v_mov_b32 v{STV+2*j+1}, s{streg(j)+1}')
        a(f"""
        s_lshl_b32 s{S_T}, s2, 3
        s_add_u32 s{S_T}, s{S_T}, s{S_WAVE}
        s_lshl_b32 s{S_T}, s{S_T}, 7
        s_add_u32 s{S_T}, s{S_T}, {WS_STAMP}
        v_mov_b32 v{T0}, s{S_T}
        s_mov_b64 exec, 1
        """)
        for j in range(n): a(f'global_store_dwordx2 v{T0}, v[{STV+2*j}:{STV+2*j+1}], s[{S_WS}:{S_WS+1}] offset:{8*j}')
    a("""
    L_end:
    s_endpgm
    """)
    lines = hazard.fix(a.lines, verbose=True)
    body = '\n'.join(lines) + '\n'
    return kernel_file([(NAME + '_kernel', body, 256, 102, 256)], [f'; @launch grid=(256,1,1) block=(512,1,1) lds={LDS_SIZE}'])

if __name__ == '__main__':
    out = sys.argv[1]
    opt = dict(kv.split('=') for kv in sys.argv[2:])
    opt = {k: int(v) for k, v in opt.items()}
    open(out, 'w').write(gen(opt))
```

```python
import sys
from asmlib import *
import hazard

LOG2E = 0x3fb8aa3b
SCALE = 0x3db504f3
INV640 = 0x3acccccd
EPS = 0x3727c5ac
LCG_A, LCG_C = 0x9E3779B1, 0x7F4A7C15

L_P1 = 0
L_Q = 4096
L_FLAG = 4608
L_ML = 12288
L_O = 12800
L_X = 16896
L_R = 18432
LDS_SIZE = 19456
WS_X1 = 0x1000
WS_X2 = 0x50000
WS_Y = 0x100000
WS_X1B = 0x200000
WS_X2B = 0x240000
WS_STAMP = 0x8000000

class G(Asm):
    def __init__(self):
        super().__init__()
        self.vm = []
    def vop(self, text, tag):
        self(text); self.vm.append(tag)
        assert len(self.vm) <= 63, len(self.vm)
    def vwait(self, tag):
        if tag not in self.vm: return
        idx = len(self.vm) - 1 - self.vm[::-1].index(tag)
        n = len(self.vm) - 1 - idx
        self(f's_waitcnt vmcnt({n})')
        self.vm = self.vm[idx + 1:]

V_LANE, V_L16, V_C, V_G = 1, 2, 3, 4
V_MASK = 6
V_T1, V_WO = 7, 8
V_W2 = 9
T0 = 10
A0 = 16
V_SA, V_SB = 32, 33
V_PLA, V_PHA, V_PLB, V_PHB = 34, 35, 36, 37
XL, XH = 38, 43
OACC = 48
QF = 56
V_YO, V_XC = 60, 61
RING = 64
T1R = 128
T2R = 148
YACC = 172
PB1 = 180
FH = 184
POLL = 196
V_PA = 204
S_WG, S_WAVE = 2, 3
S_X, S_K, S_V, S_WQ, S_WO, S_W1, S_W3, S_W2, S_OUT, S_DBG, S_WS = 4, 6, 8, 10, 12, 16, 18, 20, 22, 24, 26
S_H, S_J, S_T, S_T2 = 28, 29, 30, 31
R_K, R_V, R_T, R_WO, R_W2, R_X = 32, 36, 40, 44, 48, 52
S_TAG = 56
S_TB = 57
S_SEL1, S_SEL2 = 61, 62
S_T3 = 63
M_B1, M_B0 = 64, 66
S_EX = 68
S_CG, S_FV = 70, 71
S_4K = 72
S_X1, S_X2, S_Y = 80, 82, 84
S_CNT, S_LIM = 86, 87
S_STEP, S_RS2 = 88, 89
S_R = 96
S_CB = 97
S_YR = 98
S_X1B, S_X2B = 24, 88
S_PB = 0
EXS = 92
S_SV = [94, 95, 70, 72]

def srd(r): return f's[{r}:{r+3}]'

def gen(opt):
    a = G()
    nt = ' nt' if opt.get('nt', 1) else ''
    ntw = ' nt' if opt.get('ntw', 1) else ''
    ntw2 = ' nt' if opt.get('ntw2', 1) else ''
    stamps = opt.get('stamps', 0)
    fast = opt.get('fast', 1)
    dry = opt.get('dry', 1)
    FM = opt.get('fm', 63)
    kpre = opt.get('kpre', 3)
    skip = opt.get('skip', 0)
    S = opt.get('ring', 16)
    RSLOT = [RING + 4*i for i in range(16)] + [208 + 4*i for i in range(12)]
    STV = 64
    nst = [0]
    def streg(j): return [90, 4, 6, 8, 10, 12, 14, 16, 18, 20][j]
    SETS = {1: ['start', 'LN', 'pub1', 'qrdy', 'Kdone', 'Vdone', 'pub2', 'gemv', 'pubY', 'end'],
            2: ['start', 'qrdy', 'Kdone', 'Vdone', 'pub2', 'x2ok', 'gemv', 'pubY', 'yok', 'end']}
    def stamp(name):
        if stamps and name in SETS[stamps]:
            j = SETS[stamps].index(name); nst[0] = max(nst[0], j + 1)
            r = streg(j)
            a(f's_memrealtime s[{r}:{r+1}]')
    DPPM = 'row_mask:0xf bank_mask:0xf'
    def allred_multi(vs, tmps, ops):
        for pat in ('quad_perm:[1,0,3,2]', 'quad_perm:[2,3,0,1]', 'row_half_mirror', 'row_mirror'):
            for v, op in zip(vs, ops): a(f'{op}_dpp v{v}, v{v}, v{v} {pat} {DPPM}')
        rows_multi(vs, tmps, ops, (16, 32))
    def rows_multi(vs, tmps, ops, which):
        for sw in which:
            for v, t in zip(vs, tmps): a(f'v_mov_b32 v{t}, v{v}')
            for v, t in zip(vs, tmps): a(f'v_permlane{sw}_swap_b32 v{t}, v{v}')
            for v, t, op in zip(vs, tmps, ops): a(f'{op} v{v}, v{v}, v{t}')
    def red8(vs, op):
        for pat in ('quad_perm:[1,0,3,2]', 'quad_perm:[2,3,0,1]', 'row_half_mirror'):
            for v in vs: a(f'{op}_dpp v{v}, v{v}, v{v} {pat} {DPPM}')
    def rne(dst, src): a(f'v_cvt_pk_bf16_f32 v{dst}, 0, v{src}')
    def transpose_reduce(dst):
        for i in range(8): a(f'v_add_f32_dpp v{A0+i}, v{A0+i}, v{A0+i} row_mirror row_mask:0xf bank_mask:0x3')
        for i in range(8): a(f'v_add_f32_dpp v{A0+i}, v{A0+i+8}, v{A0+i+8} row_mirror row_mask:0xf bank_mask:0xc')
        for i in range(4): a(f'v_add_f32_dpp v{A0+i}, v{A0+i}, v{A0+i} row_half_mirror row_mask:0xf bank_mask:0x5')
        for i in range(4): a(f'v_add_f32_dpp v{A0+i}, v{A0+i+4}, v{A0+i+4} row_half_mirror row_mask:0xf bank_mask:0xa')
        for i in range(4): a(f'v_add_f32_dpp v{A0+i}, v{A0+i}, v{A0+i} quad_perm:[2,3,0,1] {DPPM}')
        a(f'v_cndmask_b32 v{A0}, v{A0}, v{A0+2}, s[{M_B1}:{M_B1+1}]')
        a(f'v_cndmask_b32 v{A0+1}, v{A0+1}, v{A0+3}, s[{M_B1}:{M_B1+1}]')
        for i in range(2): a(f'v_add_f32_dpp v{A0+i}, v{A0+i}, v{A0+i} quad_perm:[1,0,3,2] {DPPM}')
        a(f'v_cndmask_b32 v{dst}, v{A0}, v{A0+1}, s[{M_B0}:{M_B0+1}]')
    def reduce_g(base):
        for i in range(4): a(f'v_permlane32_swap_b32 v{base+i}, v{base+i+4}')
        for i in range(4): a(f'v_add_f32 v{base+i}, v{base+i}, v{base+i+4}')
        a(f'v_permlane16_swap_b32 v{base}, v{base+2}')
        a(f'v_permlane16_swap_b32 v{base+1}, v{base+3}')
        a(f'v_add_f32 v{base}, v{base}, v{base+2}')
        a(f'v_add_f32 v{base+1}, v{base+1}, v{base+3}')
    def tagchk(base, t, t2):
        a(f'v_perm_b32 v{t}, v{base+1}, v{base}, s{S_SEL1}')
        a(f'v_perm_b32 v{t2}, v{base+3}, v{base+2}, s{S_SEL2}')
        a(f'v_or_b32 v{t}, v{t}, v{t2}')
    def tag4(base):
        for k in range(4): a(f'v_and_or_b32 v{base+k}, v{base+k}, v{V_MASK}, s{S_TB+k}')
    def mk_srd(r, ptr, off_sgpr, size):
        a(f's_add_u32 s{r}, s{ptr}, s{off_sgpr}')
        a(f's_addc_u32 s{r+1}, s{ptr+1}, 0')
        a(f's_mov_b32 s{r+2}, {size}')
        a(f's_mov_b32 s{r+3}, 0x20000')
    def mk_ptr(r, off_sgpr):
        a(f's_add_u32 s{r}, s{S_WS}, s{off_sgpr}')
        a(f's_addc_u32 s{r+1}, s{S_WS+1}, 0')

    def pb_init(A, B):
        src = A if fast else B
        a(f's_mov_b64 s[{S_PB}:{S_PB+1}], s[{src}:{src+1}]')
    def pb_next(A, B):
        if not fast: return
        a(f's_and_b32 s{S_T2}, s{S_CNT}, {FM}')
        a(f's_cmp_eq_u32 s{S_T2}, {FM}')
        a(f's_cselect_b32 s{S_PB}, s{B}, s{A}')
        a(f's_cselect_b32 s{S_PB+1}, s{B+1}, s{A+1}')
    a("""
    s_cmp_ge_u32 s2, 256
    s_cbranch_scc1 L_end
    """)
    stamp('start')
    a(f"""
    s_load_dwordx16 s[4:19], s[0:1], 0
    s_load_dwordx8 s[20:27], s[0:1], 64
    v_and_b32 v{V_LANE}, 63, v0
    v_lshrrev_b32 v{T0}, 6, v0
    v_lshlrev_b32 v{V_L16}, 4, v{V_LANE}
    v_readfirstlane_b32 s{S_WAVE}, v{T0}
    v_and_b32 v{V_C}, 15, v{V_LANE}
    v_lshrrev_b32 v{V_G}, 4, v{V_LANE}
    s_and_b32 s{S_T}, s2, 7
    s_lshr_b32 s{S_T2}, s2, 3
    s_and_b32 s{S_J}, s{S_T2}, 7
    s_lshr_b32 s{S_T2}, s{S_T2}, 3
    s_lshl_b32 s{S_H}, s{S_T}, 2
    s_add_u32 s{S_H}, s{S_H}, s{S_T2}
    s_mov_b32 s{M_B1}, 0xcccccccc
    s_mov_b32 s{M_B1+1}, 0xcccccccc
    s_mov_b32 s{M_B0}, 0xaaaaaaaa
    s_mov_b32 s{M_B0+1}, 0xaaaaaaaa
    s_mov_b32 s{S_LIM}, 20000
    s_mov_b32 s{S_SEL1}, 0x0c0c0400
    s_mov_b32 s{S_SEL2}, 0x04000c0c
    v_mov_b32 v{V_MASK}, 0xffffff00
    """)
    for k in range(1, 8): a(f's_movk_i32 s{S_4K+k}, {4096*k}')
    a(f"""
    s_add_u32 s{S_T}, s{S_H}, 1
    s_lshr_b32 s{S_T}, s{S_T}, 3
    s_sub_u32 s{S_CG}, s{S_H}, s{S_T}
    s_and_b32 s{S_T}, s{S_H}, 7
    s_cmp_lg_u32 s{S_T}, 7
    s_cselect_b32 s{S_FV}, 1, 0
    s_cmp_lt_u32 s{S_CG}, 27
    s_cselect_b32 s{S_FV}, s{S_FV}, 0
    """)
    a(f"""
    s_mul_i32 s{S_T}, s{S_WAVE}, 20
    s_and_b32 s{S_T2}, s{S_WAVE}, 1
    s_mul_i32 s{S_T2}, s{S_T2}, 40
    s_cmp_lt_u32 s{S_WAVE}, 4
    s_cselect_b32 s{S_T}, s{S_T}, s{S_T2}
    s_movk_i32 s{S_STEP}, 27648
    s_cselect_b32 s{S_STEP}, 32768, s{S_STEP}
    s_cselect_b32 s{S_RS2}, 8, 16
    s_cselect_b32 s{S_T3}, 4, 3
    s_cselect_b32 s{S_EX}, 15, 7
    s_movk_i32 s{S_EX+1}, 3456
    s_cselect_b32 s{S_EX+1}, 8192, s{S_EX+1}
    s_mul_i32 s{S_T2}, s{S_J}, 80
    s_add_u32 s{S_T}, s{S_T}, s{S_T2}
    v_lshrrev_b32 v{T0}, s{S_T3}, v{V_LANE}
    v_and_b32 v{T0+1}, s{S_EX}, v{V_LANE}
    v_mul_lo_u32 v{V_T1}, v{T0}, s{S_EX+1}
    v_lshl_add_u32 v{V_T1}, v{T0+1}, 4, v{V_T1}
    v_add_u32 v{T0}, s{S_T}, v{T0}
    v_lshlrev_b32 v{T0}, 1, v{T0}
    s_mul_i32 s{S_T}, s{S_T}, s{S_EX+1}
    """)
    a(f"""
    s_lshl_b32 s{S_T2}, s{S_H}, 8
    s_lshl_b32 s{S_T3}, s{S_CG}, 7
    s_cmp_lt_u32 s{S_WAVE}, 4
    s_cselect_b32 s{S_T2}, s{S_T2}, s{S_T3}
    s_add_u32 s{S_T}, s{S_T}, s{S_T2}
    s_mul_i32 s{S_T2}, s{S_FV}, {39*3456+128}
    s_cmp_lt_u32 s{S_WAVE}, 4
    s_cselect_b32 s{S_T3}, {19*8192+256}, s{S_T2}
    s_waitcnt lgkmcnt(0)
    s_load_dword s{S_TAG}, s[{S_WS}:{S_WS+1}], 0
    s_cmp_lt_u32 s{S_WAVE}, 6
    s_cselect_b32 s{R_T}, s{S_W1}, s{S_W3}
    s_cselect_b32 s{R_T+1}, s{S_W1+1}, s{S_W3+1}
    s_cmp_lt_u32 s{S_WAVE}, 4
    s_cselect_b32 s{R_T}, s{S_WQ}, s{R_T}
    s_cselect_b32 s{R_T+1}, s{S_WQ+1}, s{R_T+1}
    s_add_u32 s{R_T}, s{R_T}, s{S_T}
    s_addc_u32 s{R_T+1}, s{R_T+1}, 0
    s_mov_b32 s{R_T+2}, s{S_T3}
    s_mov_b32 s{R_T+3}, 0x20000
    s_mov_b32 s{R_X}, s{S_X}
    s_mov_b32 s{R_X+1}, s{S_X+1}
    s_movk_i32 s{R_X+2}, 1280
    s_mov_b32 s{R_X+3}, 0x20000
    """)
    a(f'v_lshlrev_b32 v{T0+1}, 2, v{V_LANE}')
    a.vop(f'buffer_load_dwordx4 v[{A0}:{A0+3}], v{V_L16}, {srd(R_X)}, 0 offen', 'x')
    a.vop(f'buffer_load_dword v{A0+4}, v{T0+1}, {srd(R_X)}, 0 offen offset:1024', 'x')
    a(f's_mov_b32 s{S_T}, 0')
    for t in range(5):
        a.vop(f'buffer_load_dwordx4 v[{T1R+4*t}:{T1R+4*t+3}], v{V_T1}, {srd(R_T)}, s{S_T} offen{ntw}', 't1')
        if t < 4: a(f's_add_u32 s{S_T}, s{S_T}, s{S_STEP}')
    a(f'v_mov_b32 v{XL}, v{T0}')
    for t in range(1, 5): a(f'v_add_u32 v{XL+t}, s{S_RS2}, v{XL+t-1}')
    a(f"""
    s_lshl_b32 s{S_T}, s{S_H}, 6
    s_lshl_b32 s{S_T2}, s{S_J}, 3
    s_add_u32 s{S_T}, s{S_T}, s{S_T2}
    s_add_u32 s{S_T}, s{S_T}, s{S_WAVE}
    s_lshl_b32 s{S_T}, s{S_T}, 15
    """)
    mk_srd(R_K, S_K, S_T, 32768)
    mk_srd(R_V, S_V, S_T, 32768)
    a(f"""
    s_lshl_b32 s{S_T}, s{S_H}, 3
    s_add_u32 s{S_T}, s{S_T}, s{S_J}
    s_mul_i32 s{S_T}, s{S_T}, {16*1280}
    s_sub_u32 s{S_CB}, s{S_WAVE}, 1
    s_lshl_b32 s{S_T2}, s{S_CB}, 8
    s_cmp_lt_u32 s{S_CB}, 5
    s_cselect_b32 s{S_T2}, s{S_T2}, 0
    s_cselect_b32 s{S_T3}, 1, 0
    s_add_u32 s{S_T}, s{S_T}, s{S_T2}
    s_mul_i32 s{S_EX}, s{S_T3}, {15*1280+256}
    """)
    if opt.get('not2', 0): a(f's_mov_b32 s{S_EX}, 0')
    mk_srd(R_WO, S_WO, S_T, f's{S_EX}')
    a(f"""
    s_lshl_b32 s{S_T}, s{S_CG}, 3
    s_add_u32 s{S_T}, s{S_T}, s{S_J}
    s_mul_i32 s{S_T}, s{S_T}, {8*1280}
    s_add_u32 s{S_T}, s{S_T}, s{S_T2}
    s_mul_i32 s{S_T3}, s{S_T3}, s{S_FV}
    s_mul_i32 s{S_T}, s{S_T}, s{S_T3}
    s_mul_i32 s{S_EX}, s{S_T3}, {7*1280+256}
    """)
    if opt.get('not2', 0): a(f's_mov_b32 s{S_EX}, 0')
    mk_srd(R_W2, S_W2, S_T, f's{S_EX}')
    a(f"""
    v_lshlrev_b32 v{T0+1}, 4, v{V_C}
    v_mul_u32_u24 v{V_WO}, {4*1280}, v{V_G}
    v_add_u32 v{V_WO}, v{V_WO}, v{T0+1}
    v_mul_u32_u24 v{V_W2}, {2*1280}, v{V_G}
    v_add_u32 v{V_W2}, v{V_W2}, v{T0+1}
    s_lshl_b32 s{S_T}, s{S_H}, 13
    s_add_u32 s{S_T}, s{S_T}, {WS_X1}
    """)
    mk_ptr(S_X1, S_T)
    a(f"""
    s_lshl_b32 s{S_T}, s{S_H}, 13
    s_add_u32 s{S_T}, s{S_T}, {WS_X2}
    """)
    mk_ptr(S_X2, S_T)
    a(f"""
    s_add_u32 s{S_X1B}, s{S_X1}, {WS_X1B - WS_X1}
    s_addc_u32 s{S_X1B+1}, s{S_X1+1}, 0
    s_add_u32 s{S_X2B}, s{S_X2}, {WS_X2B - WS_X2}
    s_addc_u32 s{S_X2B+1}, s{S_X2+1}, 0
    s_mov_b64 s[{EXS}:{EXS+1}], -1
    """)
    a(f"""
    s_lshl_b32 s{S_T}, s{S_H}, 3
    s_add_u32 s{S_T}, s{S_T}, s{S_J}
    s_lshl_b32 s{S_T}, s{S_T}, 6
    s_and_b32 s{S_T2}, s{S_CB}, 7
    s_lshl_b32 s{S_T2}, s{S_T2}, 17
    s_add_u32 s{S_T}, s{S_T}, s{S_T2}
    s_add_u32 s{S_T}, s{S_T}, {WS_Y}
    """)
    mk_ptr(S_Y, S_T)
    a(f"""
    s_lshr_b32 s{S_R}, s{S_H}, 3
    s_cmp_eq_u32 s{S_H}, 31
    s_cselect_b32 s{S_R}, 4, s{S_R}
    s_lshl_b32 s{S_R}, s{S_R}, 3
    s_add_u32 s{S_R}, s{S_R}, s{S_J}
    s_lshl_b32 s{S_T}, s{S_R}, 14
    s_lshl_b32 s{S_T2}, s{S_WAVE}, 11
    s_add_u32 s{S_T}, s{S_T}, s{S_T2}
    s_add_u32 s{S_T}, s{S_T}, {WS_Y}
    """)
    mk_ptr(S_YR, S_T)
    a(f"""
    v_lshrrev_b32 v{T0+1}, 1, v{V_C}
    v_lshlrev_b32 v{V_YO}, 14, v{T0+1}
    v_and_b32 v{T0+1}, 1, v{V_C}
    v_lshl_add_u32 v{V_YO}, v{T0+1}, 5, v{V_YO}
    v_lshrrev_b32 v{T0+1}, 1, v{V_G}
    v_lshl_add_u32 v{V_YO}, v{T0+1}, 4, v{V_YO}
    """)
    a(f"""
    v_cmp_gt_u32 vcc, 32, v{V_LANE}
    v_mov_b32 v{T0+1}, 256
    v_mov_b32 v{T0+2}, 512
    v_cndmask_b32 v{T0+1}, v{T0+1}, v{T0+2}, vcc
    v_mov_b32 v{T0+2}, 1536
    v_cndmask_b32 v{T0+2}, v{T0+2}, 0, vcc
    v_add_u32 v{PB1}, v{V_L16}, v{T0+2}
    v_cmp_le_u32 vcc, 48, v{V_LANE}
    v_mov_b32 v{T0+2}, 768
    v_cndmask_b32 v{T0+2}, 0, v{T0+2}, vcc
    v_add_u32 v{PB1}, v{PB1}, v{T0+2}
    v_add_u32 v{PB1+1}, v{PB1}, v{T0+1}
    v_add_u32 v{PB1+2}, v{PB1+1}, v{T0+1}
    v_add_u32 v{PB1+3}, v{PB1+2}, v{T0+1}
    s_lshl_b32 s{S_T}, s{S_J}, 6
    v_lshl_add_u32 v{T0+1}, v{V_G}, 4, s{S_T}
    v_cmp_gt_u32 vcc, 8, v{V_C}
    v_mov_b32 v{T0+2}, 512
    v_cndmask_b32 v{T0+1}, v{T0+2}, v{T0+1}, vcc
    v_and_b32 v{T0+2}, 7, v{V_C}
    v_lshl_add_u32 v{V_PA+1}, v{T0+2}, 10, v{T0+1}
    v_lshrrev_b32 v{T0+1}, 5, v{V_LANE}
    v_and_b32 v{V_PA}, 31, v{V_LANE}
    v_lshlrev_b32 v{V_PA}, 4, v{V_PA}
    v_lshl_add_u32 v{V_PA}, v{T0+1}, 10, v{V_PA}
    v_add_u32 v{V_PA+2}, 4096, v{V_PA}
    s_lshl_b32 s{S_T}, s{S_J}, 5
    s_add_u32 s{S_T}, s{S_T}, 512
    v_lshrrev_b32 v{T0+1}, 3, v{V_C}
    v_lshl_add_u32 v{V_PA+3}, v{T0+1}, 8, s{S_T}
    v_lshrrev_b32 v{T0+1}, 1, v{V_G}
    v_lshl_add_u32 v{V_PA+3}, v{T0+1}, 4, v{V_PA+3}
    v_lshl_add_u32 v{V_PA+3}, v{T0+2}, 10, v{V_PA+3}
    v_mov_b32 v{T0+1}, 0
    v_mov_b32 v{T0+2}, {L_FLAG}
    ds_write_b32 v{T0+2}, v{T0+1}
    """)
    def kv_load(i):
        r = R_K if i < 32 else R_V
        t = i % 32
        so = '0' if t < 4 else f's{S_4K + (t >> 2)}'
        slot = RSLOT[i % S]
        a.vop(f'buffer_load_dwordx4 v[{slot}:{slot+3}], v{V_L16}, {srd(r)}, {so} offen offset:{(t&3)*1024}{nt}', f'kv{i}')
    nxt = [0]
    capE, capO = opt.get('capE', 0), opt.get('capO', 0)
    capn = [0]
    def cap():
        if capE and capO:
            if capE == capO:
                a(f's_waitcnt vmcnt({capE-1})')
            else:
                capn[0] += 1
                a(f's_cbranch_scc1 L_capo{capn[0]}')
                a(f's_waitcnt vmcnt({min(capE, capO)-1})' if False else f's_waitcnt vmcnt({capE-1})')
                a(f'L_capo{capn[0]}:')
                if capO < capE: raise ValueError
                a(f's_waitcnt vmcnt({capO-1})')
        elif capE:
            capn[0] += 1
            a(f's_cbranch_scc1 L_capo{capn[0]}')
            a(f's_waitcnt vmcnt({capE-1})')
            a(f'L_capo{capn[0]}:')
    def issue(n):
        for _ in range(n):
            if nxt[0] < 64:
                kv_load(nxt[0]); nxt[0] += 1

    a.vwait('x')
    a(f"""
    v_lshlrev_b32 v{T0+4}, 2, v{V_LANE}
    ds_write_b128 v{V_L16}, v[{A0}:{A0+3}] offset:{L_X}
    ds_write_b32 v{T0+4}, v{A0+4} offset:{L_X+1024}
    """)
    for t in range(5): a(f'ds_read_u16 v{A0+8+t}, v{XL+t} offset:{L_X}')
    a(f"""
    s_lshl_b32 s{S_T}, s{S_R}, 5
    v_lshl_add_u32 v{T0+5}, v{V_C}, 1, s{S_T}
    ds_read_u16 v{V_XC}, v{T0+5} offset:{L_X}
    """)
    SUM, SQ = A0+13, A0+14
    a(f'v_mov_b32 v{T0+2}, 0x3f803f80')
    a(f'v_dot2_f32_bf16 v{SUM}, v{A0}, v{T0+2}, 0')
    a(f'v_dot2_f32_bf16 v{SQ}, v{A0}, v{A0}, 0')
    for i in range(1, 5):
        a(f'v_dot2_f32_bf16 v{SUM}, v{A0+i}, v{T0+2}, v{SUM}')
        a(f'v_dot2_f32_bf16 v{SQ}, v{A0+i}, v{A0+i}, v{SQ}')
    allred_multi([SUM, SQ], [T0+2, T0+3], ['v_add_f32', 'v_add_f32'])
    a(f"""
    v_mul_f32 v{SUM}, {INV640}, v{SUM}
    v_mul_f32 v{SQ}, {INV640}, v{SQ}
    v_fma_f32 v{SQ}, -v{SUM}, v{SUM}, v{SQ}
    """)
    rne(SUM, SUM); rne(SQ, SQ)
    a(f'v_add_f32 v{SQ}, {EPS}, v{SQ}')
    rne(SQ, SQ)
    a(f'v_sqrt_f32 v{SQ}, v{SQ}')
    rne(SQ, SQ)
    a(f'v_rcp_f32 v{SQ}, v{SQ}')
    a('s_waitcnt lgkmcnt(0)')
    for t in range(5): a(f'v_lshlrev_b32 v{A0+8+t}, 16, v{A0+8+t}')
    for t in range(5): a(f'v_sub_f32 v{A0+8+t}, v{A0+8+t}, v{SUM}')
    for t in range(5): rne(A0+8+t, A0+8+t)
    for t in range(5): a(f'v_mul_f32 v{A0+8+t}, v{A0+8+t}, v{SQ}')
    for t in range(5): rne(XH+t, A0+8+t)
    for t in range(5): a(f'v_lshrrev_b32 v{XL+t}, 16, v{XH+t}')
    for i in range(8): a(f'v_mov_b32 v{OACC+i}, 0')
    D = opt.get('D', 4)
    stamp('LN')
    a(f"""
    s_waitcnt lgkmcnt(0)
    s_mul_i32 s{S_TAG}, s{S_TAG}, {LCG_A}
    s_add_u32 s{S_TAG}, s{S_TAG}, {LCG_C}
    """)
    for k in range(4): a(f's_bfe_u32 s{S_TB+k}, s{S_TAG}, {(8 << 16) | (8*k)}')
    a(f"""
    s_cmp_eq_u32 s{S_WAVE}, 0
    s_cbranch_scc1 L_w0a
    """)
    a.vm = ['t1']
    issue(kpre)
    a.vwait('t1')
    a(f"""
    s_branch L_j1
    L_w0a:
    s_waitcnt vmcnt(0)
    L_j1:
    """)
    for t in range(5):
        for i in range(4):
            a(f'v_dot2c_f32_bf16 v{OACC+2*i}, v{XL+t}, v{T1R+4*t+i}')
            a(f'v_dot2c_f32_bf16 v{OACC+2*i+1}, v{XH+t}, v{T1R+4*t+i}')
    reduce_g(OACC)
    a(f"""
    s_lshl_b32 s{S_T}, s{S_WAVE}, 9
    v_lshlrev_b32 v{T0}, 5, v{V_C}
    v_lshl_add_u32 v{T0}, v{V_G}, 3, v{T0}
    v_add_u32 v{T0}, s{S_T}, v{T0}
    ds_write_b64 v{T0}, v[{OACC}:{OACC+1}] offset:{L_P1}
    s_waitcnt lgkmcnt(0)
    s_barrier
    s_cmp_lg_u32 s{S_WAVE}, 0
    s_cbranch_scc1 L_nopub1
    """)
    for k in range(4): a(f'ds_read_b128 v[{A0+4*k}:{A0+4*k+3}], v{PB1+k} offset:{L_P1}')
    a(f"""
    s_lshl_b32 s{S_T}, s{S_J}, 10
    v_add_u32 v{T0}, s{S_T}, v{V_L16}
    s_waitcnt lgkmcnt(2)
    """)
    for k in range(4): a(f'v_add_f32 v{A0+k}, v{A0+k}, v{A0+4+k}')
    a('s_waitcnt lgkmcnt(0)')
    for k in range(4): a(f'v_add_f32 v{A0+8+k}, v{A0+8+k}, v{A0+12+k}')
    for k in range(4): a(f'v_add_f32 v{A0+k}, v{A0+k}, v{A0+8+k}')
    tag4(A0)
    a(f"""
    """)
    if fast: a(f'global_store_dwordx4 v{T0}, v[{A0}:{A0+3}], s[{S_X1}:{S_X1+1}]')
    else: a(f'global_store_dwordx4 v{T0}, v[{A0}:{A0+3}], s[{S_X1B}:{S_X1B+1}] sc1')
    stamp('pub1')
    TQ = A0 + 8
    PQ = RING
    pb_init(S_X1, S_X1B)
    if fast:
        a(f"""
        global_load_dwordx4 v[{PQ}:{PQ+3}], v{V_PA}, s[{S_PB}:{S_PB+1}] sc1
        global_load_dwordx4 v[{PQ+4}:{PQ+7}], v{V_PA}, s[{S_PB}:{S_PB+1}] offset:2048 sc1
        global_load_dwordx4 v[{PQ+8}:{PQ+11}], v{V_PA+2}, s[{S_PB}:{S_PB+1}] sc1
        global_load_dwordx4 v[{PQ+12}:{PQ+15}], v{V_PA+2}, s[{S_PB}:{S_PB+1}] offset:2048 sc1
        global_store_dwordx4 v{T0}, v[{A0}:{A0+3}], s[{S_X1B}:{S_X1B+1}] sc1
        s_mov_b32 s{S_CNT}, 0
        s_waitcnt vmcnt(1)
        s_branch L_p1_chk
        """)
    a(f"""
    s_mov_b32 s{S_CNT}, 0
    L_p1_ld:
    global_load_dwordx4 v[{PQ}:{PQ+3}], v{V_PA}, s[{S_PB}:{S_PB+1}] sc1
    global_load_dwordx4 v[{PQ+4}:{PQ+7}], v{V_PA}, s[{S_PB}:{S_PB+1}] offset:2048 sc1
    global_load_dwordx4 v[{PQ+8}:{PQ+11}], v{V_PA+2}, s[{S_PB}:{S_PB+1}] sc1
    global_load_dwordx4 v[{PQ+12}:{PQ+15}], v{V_PA+2}, s[{S_PB}:{S_PB+1}] offset:2048 sc1
    s_waitcnt vmcnt(0)
    L_p1_chk:
    """)
    for r in range(4):
        a(f'v_perm_b32 v{TQ+2*r}, v{PQ+4*r+1}, v{PQ+4*r}, s{S_SEL1}')
        a(f'v_perm_b32 v{TQ+2*r+1}, v{PQ+4*r+3}, v{PQ+4*r+2}, s{S_SEL2}')
    for r in range(4): a(f'v_or_b32 v{TQ+2*r}, v{TQ+2*r}, v{TQ+2*r+1}')
    for r in range(4): a(f'v_xor_b32 v{TQ+2*r}, s{S_TAG}, v{TQ+2*r}')
    a(f"""
    v_or_b32 v{TQ}, v{TQ}, v{TQ+2}
    v_or_b32 v{TQ+4}, v{TQ+4}, v{TQ+6}
    v_or_b32 v{TQ}, v{TQ}, v{TQ+4}
    v_cmp_ne_u32 vcc, 0, v{TQ}
    s_cbranch_vccz L_p1_ok
    s_mov_b64 exec, vcc
    s_add_u32 s{S_CNT}, s{S_CNT}, 1
    """)
    pb_next(S_X1, S_X1B)
    a(f"""
    s_cmp_lt_u32 s{S_CNT}, s{S_LIM}
    s_cbranch_scc1 L_p1_ld
    L_p1_ok:
    s_mov_b64 exec, -1
    """)
    for k in range(16): a(f'v_and_b32 v{PQ+k}, v{PQ+k}, v{V_MASK}')
    for k in range(8): a(f'v_add_f32 v{PQ+k}, v{PQ+k}, v{PQ+8+k}')
    for k in range(4): a(f'v_add_f32 v{PQ+k}, v{PQ+k}, v{PQ+4+k}')
    for k in range(4): a(f'v_permlane32_swap_b32 v{PQ+k}, v{PQ+4+k}')
    for k in range(4): a(f'v_add_f32 v{PQ+k}, v{PQ+k}, v{PQ+4+k}')
    a(f"""
    v_cvt_pk_bf16_f32 v{A0}, v{PQ}, v{PQ+1}
    v_cvt_pk_bf16_f32 v{A0+1}, v{PQ+2}, v{PQ+3}
    v_lshlrev_b32 v{T0}, 3, v{V_LANE}
    v_mov_b32 v{T0+1}, 1
    v_mov_b32 v{T0+2}, {L_FLAG}
    s_mov_b32 exec_hi, 0
    ds_write_b64 v{T0}, v[{A0}:{A0+1}] offset:{L_Q}
    s_mov_b32 exec_hi, -1
    ds_write_b32 v{T0+2}, v{T0+1}
    """)
    keepn = nxt[0]
    nxt[0] = 0; a.vm = []
    issue(16)
    a(f"""
    s_branch L_j2
    L_nopub1:
    """)
    stamp_skip = nst[0]
    nxt[0] = keepn; a.vm = [f'kv{i}' for i in range(keepn)]
    while nxt[0] < min(D, 16): issue(1)
    n = 0
    while nxt[0] < 16:
        a.vwait(f'kv{n}')
        issue(1); n += 1
    if dry:
        a(f"""
        s_cmp_lg_u32 s{S_WAVE}, {opt.get('dryw', 3)}
        s_cbranch_scc1 L_j2
        s_mov_b32 s{S_SV[0]}, s{S_WAVE}
        s_mov_b32 s{S_SV[1]}, s{S_CB}
        s_mov_b32 s{S_SV[2]}, s{S_FV}
        s_mov_b32 s{S_SV[3]}, s{S_R}
        s_mov_b32 s{S_WAVE}, 0
        s_mov_b32 s{S_CB}, 7
        s_mov_b32 s{S_FV}, 0
        s_mov_b32 s{S_R}, 0
        s_mov_b64 s[{EXS}:{EXS+1}], 0
        s_mov_b64 exec, 0
        s_branch L_tail
        L_dry_ret:
        s_mov_b32 s{S_WAVE}, s{S_SV[0]}
        s_mov_b32 s{S_CB}, s{S_SV[1]}
        s_mov_b32 s{S_FV}, s{S_SV[2]}
        s_mov_b32 s{S_R}, s{S_SV[3]}
        s_mov_b64 s[{EXS}:{EXS+1}], -1
        s_mov_b64 exec, -1
        """)
    a('L_j2:')
    a.vm = [f'kv{i}' for i in range(16)]
    a(f"""
    v_mov_b32 v{T0+2}, {L_FLAG}
    v_lshlrev_b32 v{T0+1}, 4, v{V_C}
    s_mov_b32 s{S_CNT}, 0
    L_q_ld:
    ds_read_b32 v{T0}, v{T0+2}
    ds_read_b128 v[{QF}:{QF+3}], v{T0+1} offset:{L_Q}
    s_waitcnt lgkmcnt(0)
    v_cmp_ne_u32 vcc, 1, v{T0}
    s_cbranch_vccz L_q_ok
    s_add_u32 s{S_CNT}, s{S_CNT}, 1
    s_cmp_lt_u32 s{S_CNT}, 4000000
    s_cbranch_scc1 L_q_ld
    L_q_ok:
    """)
    stamp('qrdy')
    a('s_bitcmp1_b32 s2, 0')
    def k_step(i):
        a.vwait(f'kv{i}')
        slot = RSLOT[i % S]; acc = A0 + (i % 16)
        a(f'v_dot2_f32_bf16 v{acc}, v{slot}, v{QF}, 0')
        for j in range(1, 4): a(f'v_dot2_f32_bf16 v{acc}, v{slot+j}, v{QF+j}, v{acc}')
        if i >= skip:
            if nxt[0] < 64: cap()
            issue(1)
        t2at = opt.get('t2at', 2)
        if i == t2at + 6:
            a.vop(f'global_load_dwordx4 v[{POLL}:{POLL+3}], v{V_PA+3}, s[{S_X1B}:{S_X1B+1}] sc1', 'pf')
        if t2at <= i < t2at + 6:
            t = i - t2at
            if t < 2:
                a.vop(f'buffer_load_dwordx4 v[{T2R+16+4*t}:{T2R+16+4*t+3}], v{V_W2}, {srd(R_W2)}, 0 offen offset:{1280*t}{ntw2}', 't2')
            elif not opt.get('wov', 0):
                t -= 2
                a.vop(f'buffer_load_dwordx4 v[{T2R+4*t}:{T2R+4*t+3}], v{V_WO}, {srd(R_WO)}, 0 offen offset:{1280*t}{ntw2}', 't3')
    for i in range(16): k_step(i)
    transpose_reduce(V_SA)
    for i in range(16, 32): k_step(i)
    transpose_reduce(V_SB)
    for s in (V_SA, V_SB):
        rne(s, s)
        a(f'v_mul_f32 v{s}, {SCALE}, v{s}')
        rne(s, s)
    a(f'v_max_f32 v{T0}, v{V_SA}, v{V_SB}')
    allred_multi([T0], [T0+1], ['v_max_f32'])
    a(f"""
    v_sub_f32 v{V_SA}, v{V_SA}, v{T0}
    v_sub_f32 v{V_SB}, v{V_SB}, v{T0}
    v_mul_f32 v{V_SA}, {LOG2E}, v{V_SA}
    v_mul_f32 v{V_SB}, {LOG2E}, v{V_SB}
    v_exp_f32 v{V_SA}, v{V_SA}
    v_exp_f32 v{V_SB}, v{V_SB}
    v_add_f32 v{T0+1}, v{V_SA}, v{V_SB}
    """)
    rne(V_PHA, V_SA); rne(V_PHB, V_SB)
    a(f'v_lshrrev_b32 v{V_PLA}, 16, v{V_PHA}')
    a(f'v_lshrrev_b32 v{V_PLB}, 16, v{V_PHB}')
    for i in range(8): a(f'v_mov_b32 v{OACC+i}, 0')
    for i in range(8): a(f'v_mov_b32 v{YACC+i}, 0')
    allred_multi([T0+1], [T0+2], ['v_add_f32'])
    a(f"""
    s_lshl_b32 s{S_T}, s{S_WAVE}, 3
    v_mov_b32 v{T0+2}, s{S_T}
    ds_write_b64 v{T0+2}, v[{T0}:{T0+1}] offset:{L_ML}
    """)
    stamp('Kdone')
    a.vwait('t2'); a.vwait('pf')
    a(f"""
    s_cmp_ge_u32 s{S_CB}, 5
    s_cbranch_scc1 L_noffn
    s_mov_b32 s{S_CNT}, 0
    L_pf_chk:
    """)
    tagchk(POLL, T0, T0+1)
    a(f"""
    v_cmp_ne_u32 vcc, s{S_TAG}, v{T0}
    s_cbranch_vccz L_pf_ok
    s_add_u32 s{S_CNT}, s{S_CNT}, 1
    s_cmp_ge_u32 s{S_CNT}, s{S_LIM}
    s_cbranch_scc1 L_pf_ok
    global_load_dwordx4 v[{POLL}:{POLL+3}], v{V_PA+3}, s[{S_X1B}:{S_X1B+1}] sc1
    s_waitcnt vmcnt(0)
    s_branch L_pf_chk
    L_pf_ok:
    v_and_b32 v{T0}, 1, v{V_G}
    v_cmp_eq_u32 vcc, 1, v{T0}
    v_cndmask_b32 v{A0}, v{POLL}, v{POLL+2}, vcc
    v_cndmask_b32 v{A0+1}, v{POLL+1}, v{POLL+3}, vcc
    v_and_b32 v{A0}, v{A0}, v{V_MASK}
    v_and_b32 v{A0+1}, v{A0+1}, v{V_MASK}
    """)
    red8([A0, A0+1], 'v_add_f32')
    a(f'v_mov_b32_dpp v{A0+2}, v{A0} row_ror:8 {DPPM}')
    a(f'v_mov_b32_dpp v{A0+3}, v{A0+1} row_ror:8 {DPPM}')
    for k in range(4): rne(A0+k, A0+k)
    for k in range(2): a(f'v_mul_f32 v{A0+4+k}, {LOG2E ^ 0x80000000}, v{A0+k}')
    for k in range(2): a(f'v_exp_f32 v{A0+4+k}, v{A0+4+k}')
    for k in range(2): a(f'v_add_f32 v{A0+4+k}, 1.0, v{A0+4+k}')
    for k in range(2): a(f'v_rcp_f32 v{A0+4+k}, v{A0+4+k}')
    for k in range(2): a(f'v_mul_f32 v{A0+4+k}, v{A0+k}, v{A0+4+k}')
    for k in range(2): rne(A0+4+k, A0+4+k)
    for k in range(2): a(f'v_mul_f32 v{A0+4+k}, v{A0+4+k}, v{A0+2+k}')
    for k in range(2): rne(FH+2+k, A0+4+k)
    for k in range(2): a(f'v_lshrrev_b32 v{FH+k}, 16, v{FH+2+k}')
    for t in range(2):
        for i in range(4):
            a(f'v_dot2c_f32_bf16_dpp v{YACC+2*i}, v{FH+t}, v{T2R+16+4*t+i} row_newbcast:0 {DPPM}')
            a(f'v_dot2c_f32_bf16_dpp v{YACC+2*i+1}, v{FH+2+t}, v{T2R+16+4*t+i} row_newbcast:0 {DPPM}')
    a('L_noffn:')
    wov = opt.get('wov', 0)
    a('s_bitcmp1_b32 s2, 0')
    for i in range(32, 64):
        a.vwait(f'kv{i}')
        slot = RSLOT[i % S]
        lo, hi = (V_PLA, V_PHA) if i < 48 else (V_PLB, V_PHB)
        ln = i % 16
        for j in range(4):
            a(f'v_dot2c_f32_bf16_dpp v{OACC+2*j}, v{lo}, v{slot+j} row_newbcast:{ln} {DPPM}')
            a(f'v_dot2c_f32_bf16_dpp v{OACC+2*j+1}, v{hi}, v{slot+j} row_newbcast:{ln} {DPPM}')
        if nxt[0] < 64: cap()
        issue(1)
        if wov and wov <= i < wov + 4:
            t = i - wov
            a.vop(f'buffer_load_dwordx4 v[{T2R+4*t}:{T2R+4*t+3}], v{V_WO}, {srd(R_WO)}, 0 offen offset:{1280*t}{ntw2}', 't3')
    stamp('Vdone')
    RX = f's[{EXS}:{EXS+1}]'
    def skipdry(label):
        if dry: a(f's_cbranch_execz {label}')
    a('L_tail:')
    reduce_g(OACC)
    a.vwait('t3')
    a(f"""
    s_lshl_b32 s{S_T}, s{S_WAVE}, 9
    v_lshlrev_b32 v{T0}, 5, v{V_C}
    v_lshl_add_u32 v{T0}, v{V_G}, 3, v{T0}
    v_add_u32 v{T0}, s{S_T}, v{T0}
    ds_write_b64 v{T0}, v[{OACC}:{OACC+1}] offset:{L_O}
    v_lshrrev_b32 v{T0+1}, 5, v{V_LANE}
    v_lshl_add_u32 v{T0+2}, v{T0+1}, 2, v{V_LANE}
    v_and_b32 v{T0+2}, 7, v{T0+2}
    v_lshlrev_b32 v{T0+2}, 3, v{T0+2}
    v_and_b32 v{T0+3}, 31, v{V_LANE}
    v_lshlrev_b32 v{T0+3}, 4, v{T0+3}
    v_lshl_add_u32 v{T0+3}, v{T0+1}, 11, v{T0+3}
    s_waitcnt lgkmcnt(0)
    """)
    skipdry('L_nobarC')
    a(f"""
    s_barrier
    L_nobarC:
    s_cmp_lt_u32 s{S_CB}, 5
    s_cbranch_scc1 L_nopub2
    s_cmp_lg_u32 s{S_WAVE}, 0
    s_cbranch_scc1 L_red
    ds_read_b64 v[{T0+4}:{T0+5}], v{T0+2} offset:{L_ML}
    """)
    for w in range(4): a(f'ds_read_b128 v[{A0+4*w}:{A0+4*w+3}], v{T0+3} offset:{L_O + 512*w}')
    a(f"""
    s_lshl_b32 s{S_T}, s{S_J}, 10
    v_add_u32 v{T0+2}, s{S_T}, v{V_L16}
    s_mov_b32 s{S_EX}, 0
    s_movk_i32 s{S_EX+1}, 0xff
    s_waitcnt lgkmcnt(4)
    v_mov_b32 v{T0}, v{T0+4}
    """)
    red8([T0], 'v_max_f32')
    a(f"""
    v_sub_f32 v{T0+4}, v{T0+4}, v{T0}
    v_mul_f32 v{T0+4}, {LOG2E}, v{T0+4}
    v_exp_f32 v{T0+4}, v{T0+4}
    s_waitcnt lgkmcnt(0)
    v_mul_f32 v{T0+5}, v{T0+4}, v{T0+5}
    """)
    for k in range(4): a(f'v_mul_f32_dpp v{OACC+k}, v{T0+4}, v{A0+k} row_newbcast:0 {DPPM}')
    red8([T0+5], 'v_add_f32')
    for w in range(1, 4):
        for k in range(4): a(f'v_fmac_f32_dpp v{OACC+k}, v{T0+4}, v{A0+4*w+k} row_newbcast:{w} {DPPM}')
    for k in range(4): a(f'v_permlane32_swap_b32 v{OACC+k}, v{OACC+4+k}')
    for k in range(4): a(f'v_add_f32 v{OACC+k}, v{OACC+k}, v{OACC+4+k}')
    for k in range(4): a(f'v_cndmask_b32 v{OACC+k}, v{OACC+k}, v{T0 if k % 2 == 0 else T0+5}, s[{S_EX}:{S_EX+1}]')
    tag4(OACC)
    a(f's_and_b32 exec_hi, exec_hi, 0xff')
    if fast: a(f'global_store_dwordx4 v{T0+2}, v[{OACC}:{OACC+3}], s[{S_X2}:{S_X2+1}]')
    a(f"""
    global_store_dwordx4 v{T0+2}, v[{OACC}:{OACC+3}], s[{S_X2B}:{S_X2B+1}] sc1
    s_mov_b64 exec, {RX}
    """)
    stamp('pub2')
    a("""
    s_cbranch_execnz L_red
    L_nopub2:
    """)
    pb_init(S_X2, S_X2B)
    a(f"""
    s_mov_b32 s{S_CNT}, 0
    """)
    skipdry('L_p2_ok')
    a(f"""
    L_p2_ld:
    global_load_dwordx4 v[{POLL}:{POLL+3}], v{V_PA+1}, s[{S_PB}:{S_PB+1}] sc1
    s_waitcnt vmcnt(0)
    """)
    tagchk(POLL, T0, T0+1)
    a(f"""
    v_cmp_ne_u32 vcc, s{S_TAG}, v{T0}
    s_cbranch_vccz L_p2_ok
    s_mov_b64 exec, vcc
    s_add_u32 s{S_CNT}, s{S_CNT}, 1
    """)
    pb_next(S_X2, S_X2B)
    a(f"""
    s_cmp_lt_u32 s{S_CNT}, s{S_LIM}
    s_cbranch_scc1 L_p2_ld
    L_p2_ok:
    s_mov_b64 exec, {RX}
    """)
    if stamps >= 2:
        stamp('x2ok'); a(f's_mov_b32 s100, s{S_CNT}')
    for k in range(4): a(f'v_and_b32 v{POLL+k}, v{POLL+k}, v{V_MASK}')
    a(f'v_mov_b32 v{T0}, v{POLL}')
    red8([T0], 'v_max_f32')
    a(f"""
    v_sub_f32 v{T0+1}, v{POLL}, v{T0}
    v_mul_f32 v{T0+1}, {LOG2E}, v{T0+1}
    v_exp_f32 v{T0+1}, v{T0+1}
    v_mul_f32 v{T0+2}, v{T0+1}, v{POLL+1}
    """)
    for k in range(4): a(f'v_mul_f32_dpp v{A0+k}, v{T0+1}, v{POLL+k} row_ror:8 {DPPM}')
    red8([T0+2, A0, A0+1, A0+2, A0+3], 'v_add_f32')
    a(f'v_rcp_f32 v{T0+2}, v{T0+2}')
    for k in range(4): a(f'v_mul_f32_dpp v{A0+k}, v{T0+2}, v{A0+k} row_ror:8 {DPPM}')
    for k in range(4): rne(A0+4+k, A0+k)
    for k in range(4): a(f'v_lshrrev_b32 v{A0+k}, 16, v{A0+4+k}')
    for t in range(4):
        for i in range(4):
            a(f'v_dot2c_f32_bf16_dpp v{YACC+2*i}, v{A0+t}, v{T2R+4*t+i} row_newbcast:0 {DPPM}')
            a(f'v_dot2c_f32_bf16_dpp v{YACC+2*i+1}, v{A0+4+t}, v{T2R+4*t+i} row_newbcast:0 {DPPM}')
    stamp('gemv')
    reduce_g(YACC)
    a(f'v_permlane16_swap_b32 v{YACC}, v{YACC+2}')
    a(f'v_permlane16_swap_b32 v{YACC+1}, v{YACC+3}')
    tag4(YACC)
    a(f"""
    s_and_b32 exec_lo, exec_lo, 0xffff
    s_and_b32 exec_hi, exec_hi, 0xffff
    global_store_dwordx4 v{V_YO}, v[{YACC}:{YACC+3}], s[{S_Y}:{S_Y+1}] sc1
    s_mov_b64 exec, {RX}
    L_red:
    """)
    stamp('pubY')
    a(f"""
    s_cmp_lg_u32 s{S_FV}, 0
    s_cbranch_scc1 L_fin
    v_and_b32 v{T0+4}, 3, v{V_LANE}
    v_lshlrev_b32 v{T0+4}, 4, v{T0+4}
    v_lshrrev_b32 v{T0+5}, 2, v{V_C}
    v_lshl_add_u32 v{T0+4}, v{T0+5}, 2, v{T0+4}
    s_lshl_b32 s{S_T}, s{S_WAVE}, 6
    v_add_u32 v{T0+4}, s{S_T}, v{T0+4}
    s_mov_b32 s{S_CNT}, 0
    """)
    skipdry('L_p3_ok')
    a(f"""
    L_p3_ld:
    global_load_dwordx4 v[{POLL}:{POLL+3}], v{V_L16}, s[{S_YR}:{S_YR+1}] sc1
    global_load_dwordx4 v[{POLL+4}:{POLL+7}], v{V_L16}, s[{S_YR}:{S_YR+1}] offset:1024 sc1
    s_waitcnt vmcnt(0)
    """)
    tagchk(POLL, T0, T0+1)
    tagchk(POLL+4, T0+2, T0+3)
    a(f"""
    v_cmp_ne_u32 vcc, s{S_TAG}, v{T0}
    v_cmp_ne_u32 s[{S_EX}:{S_EX+1}], s{S_TAG}, v{T0+2}
    s_or_b64 vcc, vcc, s[{S_EX}:{S_EX+1}]
    s_cbranch_vccz L_p3_ok
    s_mov_b64 exec, vcc
    s_add_u32 s{S_CNT}, s{S_CNT}, 1
    s_cmp_lt_u32 s{S_CNT}, s{S_LIM}
    s_cbranch_scc1 L_p3_ld
    L_p3_ok:
    s_mov_b64 exec, {RX}
    """)
    if stamps >= 2:
        stamp('yok'); a(f's_mov_b32 s101, s{S_CNT}')
    for k in range(8): a(f'v_and_b32 v{POLL+k}, v{POLL+k}, v{V_MASK}')
    for k in range(4): a(f'v_add_f32 v{POLL+k}, v{POLL+k}, v{POLL+4+k}')
    for k in range(2): a(f'v_add_f32_dpp v{POLL+k}, v{POLL+k}, v{POLL+k} row_ror:8 row_mask:0xf bank_mask:0x3')
    for k in range(2): a(f'v_add_f32_dpp v{POLL+k}, v{POLL+2+k}, v{POLL+2+k} row_ror:8 row_mask:0xf bank_mask:0xc')
    a(f'v_add_f32_dpp v{POLL}, v{POLL}, v{POLL} row_shl:4 row_mask:0xf bank_mask:0x5')
    a(f'v_add_f32_dpp v{POLL}, v{POLL+1}, v{POLL+1} row_shr:4 row_mask:0xf bank_mask:0xa')
    rows_multi([POLL], [T0], ['v_add_f32'], (16, 32))
    a(f"""
    s_and_b64 exec, exec, 0xffff
    ds_write_b32 v{T0+4}, v{POLL} offset:{L_R}
    s_mov_b64 exec, {RX}
    v_lshlrev_b32 v{T0}, 2, v{V_LANE}
    s_waitcnt lgkmcnt(0)
    """)
    skipdry('L_nobarE')
    a(f"""
    s_barrier
    L_nobarE:
    s_cmp_lg_u32 s{S_WAVE}, 0
    s_cbranch_scc1 L_fin
    ds_read_b32 v{T0+1}, v{T0} offset:{L_R}
    ds_read_b32 v{T0+2}, v{T0} offset:{L_R+256}
    v_lshlrev_b32 v{V_XC}, 16, v{V_XC}
    s_lshl_b32 s{S_T}, s{S_R}, 5
    v_lshlrev_b32 v{T0+3}, 1, v{V_C}
    s_mov_b32 s{R_X}, s{S_OUT}
    s_mov_b32 s{R_X+1}, s{S_OUT+1}
    s_waitcnt lgkmcnt(0)
    v_add_f32 v{T0+1}, v{T0+1}, v{T0+2}
    """)
    rows_multi([T0+1], [T0+2], ['v_add_f32'], (16, 32))
    a(f"""
    v_add_f32 v{T0+1}, v{T0+1}, v{V_XC}
    v_cvt_pk_bf16_f32 v{T0+1}, v{T0+1}, v{T0+1}
    s_and_b64 exec, exec, 0xffff
    buffer_store_short v{T0+1}, v{T0+3}, {srd(R_X)}, s{S_T} offen
    s_mov_b64 exec, {RX}
    s_cmp_lg_u32 s{S_R}, 0
    s_cbranch_scc1 L_fin
    v_mov_b32 v{T0}, 0
    v_mov_b32 v{T0+1}, s{S_TAG}
    s_and_b64 exec, exec, 1
    global_store_dword v{T0}, v{T0+1}, s[{S_WS}:{S_WS+1}]
    s_mov_b64 exec, {RX}
    L_fin:
    """)
    if dry: a('s_cbranch_execz L_dry_ret')
    if stamps:
        stamp('end')
        n = nst[0]
        a('s_waitcnt lgkmcnt(0)')
        for j in range(n):
            a(f'v_mov_b32 v{STV+2*j}, s{streg(j)}')
            a(f'v_mov_b32 v{STV+2*j+1}, s{streg(j)+1}')
        a(f"""
        s_lshl_b32 s{S_T}, s2, 3
        s_add_u32 s{S_T}, s{S_T}, s{S_WAVE}
        s_lshl_b32 s{S_T}, s{S_T}, 7
        s_add_u32 s{S_T}, s{S_T}, {WS_STAMP}
        v_mov_b32 v{T0}, s{S_T}
        s_mov_b64 exec, 1
        """)
        for j in range(n): a(f'global_store_dwordx2 v{T0}, v[{STV+2*j}:{STV+2*j+1}], s[{S_WS}:{S_WS+1}] offset:{8*j}')
        if stamps >= 2:
            a(f'v_mov_b32 v{STV}, s100')
            a(f'v_mov_b32 v{STV+1}, s101')
            a(f'global_store_dwordx2 v{T0}, v[{STV}:{STV+1}], s[{S_WS}:{S_WS+1}] offset:{8*n}')
    a("""
    L_end:
    s_endpgm
    """)
    lines = hazard.fix(a.lines, verbose=True)
    body = '\n'.join(lines) + '\n'
    return kernel_file([(NAME + '_kernel', body, 256, 102, 256)], [f'; @launch grid=(256,1,1) block=(512,1,1) lds={LDS_SIZE}'])

if __name__ == '__main__':
    out = sys.argv[1]
    opt = dict(kv.split('=') for kv in sys.argv[2:])
    opt = {k: int(v) for k, v in opt.items()}
    open(out, 'w').write(gen(opt))
```

```python
import sys
from asmlib import *
import hazard

LOG2E = 0x3fb8aa3b
SCALE = 0x3db504f3
INV640 = 0x3acccccd
EPS = 0x3727c5ac
LCG_A, LCG_C = 0x9E3779B1, 0x7F4A7C15

L_P1 = 0
L_Q = 4096
L_FLAG = 4608
L_ML = 12288
L_O = 12800
L_X = 16896
L_R = 18432
LDS_SIZE = 19456
WS_X1 = 0x1000
WS_X2 = 0x50000
WS_Y = 0x100000
WS_X1B = 0x200000
WS_X2B = 0x240000
WS_STAMP = 0x8000000

class G(Asm):
    def __init__(self):
        super().__init__()
        self.vm = []
    def vop(self, text, tag):
        self(text); self.vm.append(tag)
        assert len(self.vm) <= 63, len(self.vm)
    def vwait(self, tag):
        if tag not in self.vm: return
        idx = len(self.vm) - 1 - self.vm[::-1].index(tag)
        n = len(self.vm) - 1 - idx
        self(f's_waitcnt vmcnt({n})')
        self.vm = self.vm[idx + 1:]

V_LANE, V_L16, V_C, V_G = 1, 2, 3, 4
V_MASK = 6
V_T1, V_WO = 7, 8
V_W2 = 9
T0 = 10
A0 = 16
V_SA, V_SB = 32, 33
V_PLA, V_PHA, V_PLB, V_PHB = 34, 35, 36, 37
XL, XH = 38, 43
OACC = 48
QF = 56
V_YO, V_XC = 60, 61
RING = 64
T1R = 128
T2R = 148
YACC = 172
PB1 = 180
FH = 184
POLL = 196
V_PA = 204
S_WG, S_WAVE = 2, 3
S_X, S_K, S_V, S_WQ, S_WO, S_W1, S_W3, S_W2, S_OUT, S_DBG, S_WS = 4, 6, 8, 10, 12, 16, 18, 20, 22, 24, 26
S_H, S_J, S_T, S_T2 = 28, 29, 30, 31
R_K, R_V, R_T, R_WO, R_W2, R_X = 32, 36, 40, 44, 48, 52
S_TAG = 56
S_TB = 57
S_SEL1, S_SEL2 = 61, 62
S_T3 = 63
M_B1, M_B0 = 64, 66
S_EX = 68
S_CG, S_FV = 70, 71
S_4K = 72
S_X1, S_X2, S_Y = 80, 82, 84
S_CNT, S_LIM = 86, 87
S_STEP, S_RS2 = 88, 89
S_R = 96
S_CB = 97
S_YR = 98
S_X1B, S_X2B = 24, 88
S_PB = 0
EXS = 92
S_SV = [94, 95, 70, 72]

def srd(r): return f's[{r}:{r+3}]'

def gen(opt):
    a = G()
    nt = ' nt' if opt.get('nt', 1) else ''
    ntw = ' nt' if opt.get('ntw', 1) else ''
    ntw2 = ' nt' if opt.get('ntw2', 1) else ''
    stamps = opt.get('stamps', 0)
    fast = opt.get('fast', 1)
    dry = opt.get('dry', 1)
    FM = opt.get('fm', 63)
    kpre = opt.get('kpre', 3)
    skip = opt.get('skip', 0)
    S = opt.get('ring', 16)
    RSLOT = [RING + 4*i for i in range(16)] + [208 + 4*i for i in range(12)]
    STV = 64
    nst = [0]
    def streg(j): return [90, 4, 6, 8, 10, 12, 14, 16, 18, 20][j]
    SETS = {1: ['start', 'LN', 'pub1', 'qrdy', 'Kdone', 'Vdone', 'pub2', 'gemv', 'pubY', 'end'],
            2: ['start', 'qrdy', 'Kdone', 'Vdone', 'pub2', 'x2ok', 'gemv', 'pubY', 'yok', 'end']}
    def stamp(name):
        if stamps and name in SETS[stamps]:
            j = SETS[stamps].index(name); nst[0] = max(nst[0], j + 1)
            r = streg(j)
            a(f's_memrealtime s[{r}:{r+1}]')
    DPPM = 'row_mask:0xf bank_mask:0xf'
    def allred_multi(vs, tmps, ops):
        for pat in ('quad_perm:[1,0,3,2]', 'quad_perm:[2,3,0,1]', 'row_half_mirror', 'row_mirror'):
            for v, op in zip(vs, ops): a(f'{op}_dpp v{v}, v{v}, v{v} {pat} {DPPM}')
        rows_multi(vs, tmps, ops, (16, 32))
    def rows_multi(vs, tmps, ops, which):
        for sw in which:
            for v, t in zip(vs, tmps): a(f'v_mov_b32 v{t}, v{v}')
            for v, t in zip(vs, tmps): a(f'v_permlane{sw}_swap_b32 v{t}, v{v}')
            for v, t, op in zip(vs, tmps, ops): a(f'{op} v{v}, v{v}, v{t}')
    def red8(vs, op):
        for pat in ('quad_perm:[1,0,3,2]', 'quad_perm:[2,3,0,1]', 'row_half_mirror'):
            for v in vs: a(f'{op}_dpp v{v}, v{v}, v{v} {pat} {DPPM}')
    def rne(dst, src): a(f'v_cvt_pk_bf16_f32 v{dst}, 0, v{src}')
    def transpose_reduce(dst):
        for i in range(8): a(f'v_add_f32_dpp v{A0+i}, v{A0+i}, v{A0+i} row_mirror row_mask:0xf bank_mask:0x3')
        for i in range(8): a(f'v_add_f32_dpp v{A0+i}, v{A0+i+8}, v{A0+i+8} row_mirror row_mask:0xf bank_mask:0xc')
        for i in range(4): a(f'v_add_f32_dpp v{A0+i}, v{A0+i}, v{A0+i} row_half_mirror row_mask:0xf bank_mask:0x5')
        for i in range(4): a(f'v_add_f32_dpp v{A0+i}, v{A0+i+4}, v{A0+i+4} row_half_mirror row_mask:0xf bank_mask:0xa')
        for i in range(4): a(f'v_add_f32_dpp v{A0+i}, v{A0+i}, v{A0+i} quad_perm:[2,3,0,1] {DPPM}')
        a(f'v_cndmask_b32 v{A0}, v{A0}, v{A0+2}, s[{M_B1}:{M_B1+1}]')
        a(f'v_cndmask_b32 v{A0+1}, v{A0+1}, v{A0+3}, s[{M_B1}:{M_B1+1}]')
        for i in range(2): a(f'v_add_f32_dpp v{A0+i}, v{A0+i}, v{A0+i} quad_perm:[1,0,3,2] {DPPM}')
        a(f'v_cndmask_b32 v{dst}, v{A0}, v{A0+1}, s[{M_B0}:{M_B0+1}]')
    def reduce_g(base):
        for i in range(4): a(f'v_permlane32_swap_b32 v{base+i}, v{base+i+4}')
        for i in range(4): a(f'v_add_f32 v{base+i}, v{base+i}, v{base+i+4}')
        a(f'v_permlane16_swap_b32 v{base}, v{base+2}')
        a(f'v_permlane16_swap_b32 v{base+1}, v{base+3}')
        a(f'v_add_f32 v{base}, v{base}, v{base+2}')
        a(f'v_add_f32 v{base+1}, v{base+1}, v{base+3}')
    def tagchk(base, t, t2):
        a(f'v_perm_b32 v{t}, v{base+1}, v{base}, s{S_SEL1}')
        a(f'v_perm_b32 v{t2}, v{base+3}, v{base+2}, s{S_SEL2}')
        a(f'v_or_b32 v{t}, v{t}, v{t2}')
    def tag4(base):
        for k in range(4): a(f'v_and_or_b32 v{base+k}, v{base+k}, v{V_MASK}, s{S_TB+k}')
    def mk_srd(r, ptr, off_sgpr, size):
        a(f's_add_u32 s{r}, s{ptr}, s{off_sgpr}')
        a(f's_addc_u32 s{r+1}, s{ptr+1}, 0')
        a(f's_mov_b32 s{r+2}, {size}')
        a(f's_mov_b32 s{r+3}, 0x20000')
    def mk_ptr(r, off_sgpr):
        a(f's_add_u32 s{r}, s{S_WS}, s{off_sgpr}')
        a(f's_addc_u32 s{r+1}, s{S_WS+1}, 0')

    def pb_init(A, B):
        src = A if fast else B
        a(f's_mov_b64 s[{S_PB}:{S_PB+1}], s[{src}:{src+1}]')
    def pb_next(A, B):
        if not fast: return
        a(f's_and_b32 s{S_T2}, s{S_CNT}, {FM}')
        a(f's_cmp_eq_u32 s{S_T2}, {FM}')
        a(f's_cselect_b32 s{S_PB}, s{B}, s{A}')
        a(f's_cselect_b32 s{S_PB+1}, s{B+1}, s{A+1}')
    GMCODE = ''
    if opt.get('gm', 0):
        GMCODE = chr(10).join([f's_lshr_b32 s{S_H}, s{S_T}, 1', f's_and_b32 s{S_H}, s{S_H}, 1', f's_lshl_b32 s{S_H}, s{S_H}, 2',
            f's_lshr_b32 s{S_T3}, s{S_T}, 2', f's_lshl_b32 s{S_T3}, s{S_T3}, 1', f's_or_b32 s{S_H}, s{S_H}, s{S_T3}',
            f's_and_b32 s{S_T}, s{S_T}, 1', f's_or_b32 s{S_T}, s{S_T}, s{S_H}'])
    a("""
    s_cmp_ge_u32 s2, 256
    s_cbranch_scc1 L_end
    """)
    stamp('start')
    a(f"""
    s_load_dwordx16 s[4:19], s[0:1], 0
    s_load_dwordx8 s[20:27], s[0:1], 64
    v_and_b32 v{V_LANE}, 63, v0
    v_lshrrev_b32 v{T0}, 6, v0
    v_lshlrev_b32 v{V_L16}, 4, v{V_LANE}
    v_readfirstlane_b32 s{S_WAVE}, v{T0}
    v_and_b32 v{V_C}, 15, v{V_LANE}
    v_lshrrev_b32 v{V_G}, 4, v{V_LANE}
    s_and_b32 s{S_T}, s2, 7
    s_lshr_b32 s{S_T2}, s2, 3
    s_and_b32 s{S_J}, s{S_T2}, 7
    s_lshr_b32 s{S_T2}, s{S_T2}, 3
    {GMCODE}
    s_xor_b32 s{S_T}, s{S_T}, {opt.get('hx', 0)}
    s_lshl_b32 s{S_H}, s{S_T}, 2
    s_add_u32 s{S_H}, s{S_H}, s{S_T2}
    {'s_lshr_b32 s%d, s2, 3' % S_H if opt.get('map', 0) else ''}
    {'s_and_b32 s%d, s2, 7' % S_J if opt.get('map', 0) else ''}
    s_mov_b32 s{M_B1}, 0xcccccccc
    s_mov_b32 s{M_B1+1}, 0xcccccccc
    s_mov_b32 s{M_B0}, 0xaaaaaaaa
    s_mov_b32 s{M_B0+1}, 0xaaaaaaaa
    s_mov_b32 s{S_LIM}, 20000
    s_mov_b32 s{S_SEL1}, 0x0c0c0400
    s_mov_b32 s{S_SEL2}, 0x04000c0c
    v_mov_b32 v{V_MASK}, 0xffffff00
    """)
    for k in range(1, 8): a(f's_movk_i32 s{S_4K+k}, {4096*k}')
    a(f"""
    s_add_u32 s{S_T}, s{S_H}, 1
    s_lshr_b32 s{S_T}, s{S_T}, 3
    s_sub_u32 s{S_CG}, s{S_H}, s{S_T}
    s_and_b32 s{S_T}, s{S_H}, 7
    s_cmp_lg_u32 s{S_T}, 7
    s_cselect_b32 s{S_FV}, 1, 0
    s_cmp_lt_u32 s{S_CG}, 27
    s_cselect_b32 s{S_FV}, s{S_FV}, 0
    """)
    a(f"""
    s_mul_i32 s{S_T}, s{S_WAVE}, 20
    s_and_b32 s{S_T2}, s{S_WAVE}, 1
    s_mul_i32 s{S_T2}, s{S_T2}, 40
    s_cmp_lt_u32 s{S_WAVE}, 4
    s_cselect_b32 s{S_T}, s{S_T}, s{S_T2}
    s_movk_i32 s{S_STEP}, 27648
    s_cselect_b32 s{S_STEP}, 32768, s{S_STEP}
    s_cselect_b32 s{S_RS2}, 8, 16
    s_cselect_b32 s{S_T3}, 4, 3
    s_cselect_b32 s{S_EX}, 15, 7
    s_movk_i32 s{S_EX+1}, 3456
    s_cselect_b32 s{S_EX+1}, 8192, s{S_EX+1}
    s_mul_i32 s{S_T2}, s{S_J}, 80
    s_add_u32 s{S_T}, s{S_T}, s{S_T2}
    v_lshrrev_b32 v{T0}, s{S_T3}, v{V_LANE}
    v_and_b32 v{T0+1}, s{S_EX}, v{V_LANE}
    v_mul_lo_u32 v{V_T1}, v{T0}, s{S_EX+1}
    v_lshl_add_u32 v{V_T1}, v{T0+1}, 4, v{V_T1}
    v_add_u32 v{T0}, s{S_T}, v{T0}
    v_lshlrev_b32 v{T0}, 1, v{T0}
    s_mul_i32 s{S_T}, s{S_T}, s{S_EX+1}
    """)
    a(f"""
    s_lshl_b32 s{S_T2}, s{S_H}, 8
    s_lshl_b32 s{S_T3}, s{S_CG}, 7
    s_cmp_lt_u32 s{S_WAVE}, 4
    s_cselect_b32 s{S_T2}, s{S_T2}, s{S_T3}
    s_add_u32 s{S_T}, s{S_T}, s{S_T2}
    s_mul_i32 s{S_T2}, s{S_FV}, {39*3456+128}
    s_cmp_lt_u32 s{S_WAVE}, 4
    s_cselect_b32 s{S_T3}, {19*8192+256}, s{S_T2}
    s_waitcnt lgkmcnt(0)
    s_load_dword s{S_TAG}, s[{S_WS}:{S_WS+1}], 0
    s_cmp_lt_u32 s{S_WAVE}, 6
    s_cselect_b32 s{R_T}, s{S_W1}, s{S_W3}
    s_cselect_b32 s{R_T+1}, s{S_W1+1}, s{S_W3+1}
    s_cmp_lt_u32 s{S_WAVE}, 4
    s_cselect_b32 s{R_T}, s{S_WQ}, s{R_T}
    s_cselect_b32 s{R_T+1}, s{S_WQ+1}, s{R_T+1}
    s_add_u32 s{R_T}, s{R_T}, s{S_T}
    s_addc_u32 s{R_T+1}, s{R_T+1}, 0
    s_mov_b32 s{R_T+2}, s{S_T3}
    s_mov_b32 s{R_T+3}, 0x20000
    s_mov_b32 s{R_X}, s{S_X}
    s_mov_b32 s{R_X+1}, s{S_X+1}
    s_movk_i32 s{R_X+2}, 1280
    s_mov_b32 s{R_X+3}, 0x20000
    """)
    a(f'v_lshlrev_b32 v{T0+1}, 2, v{V_LANE}')
    a.vop(f'buffer_load_dwordx4 v[{A0}:{A0+3}], v{V_L16}, {srd(R_X)}, 0 offen', 'x')
    a.vop(f'buffer_load_dword v{A0+4}, v{T0+1}, {srd(R_X)}, 0 offen offset:1024', 'x')
    a(f's_mov_b32 s{S_T}, 0')
    for t in range(5):
        a.vop(f'buffer_load_dwordx4 v[{T1R+4*t}:{T1R+4*t+3}], v{V_T1}, {srd(R_T)}, s{S_T} offen{ntw}', 't1')
        if t < 4: a(f's_add_u32 s{S_T}, s{S_T}, s{S_STEP}')
    a(f'v_mov_b32 v{XL}, v{T0}')
    for t in range(1, 5): a(f'v_add_u32 v{XL+t}, s{S_RS2}, v{XL+t-1}')
    a(f"""
    s_lshl_b32 s{S_T}, s{S_H}, 6
    s_lshl_b32 s{S_T2}, s{S_J}, 3
    s_add_u32 s{S_T}, s{S_T}, s{S_T2}
    s_add_u32 s{S_T}, s{S_T}, s{S_WAVE}
    s_lshl_b32 s{S_T}, s{S_T}, 15
    """)
    PAT = opt.get('pat', 0)
    if PAT:
        a(f"""
        s_lshl_b32 s{S_T}, s{S_H}, 3
        s_add_u32 s{S_T}, s{S_T}, s{S_J}
        s_lshl_b32 s{S_T}, s{S_T}, 18
        s_lshl_b32 s{S_T2}, s{S_WAVE}, 10
        s_add_u32 s{S_T}, s{S_T}, s{S_T2}
        """)
    ROT = opt.get('rot', 0)
    S_ROT = S_4K + 2
    if ROT == 5:
        a(f's_lshl_b32 s{S_ROT}, s{S_WAVE}, 12')
    elif ROT == 6:
        a(f"""
        s_lshl_b32 s{S_ROT}, s2, 3
        s_add_u32 s{S_ROT}, s{S_ROT}, s{S_WAVE}
        s_mul_i32 s{S_ROT}, s{S_ROT}, 0x9E3779B1
        s_lshr_b32 s{S_ROT}, s{S_ROT}, 27
        s_lshl_b32 s{S_ROT}, s{S_ROT}, 10
        """)
    elif ROT == 7:
        a(f"""
        s_lshl_b32 s{S_ROT}, s{S_WAVE}, 2
        s_add_u32 s{S_ROT}, s{S_ROT}, s{S_H}
        s_lshl_b32 s{S_ROT}, s{S_ROT}, 10
        """)
    elif ROT == 1:
        a(f"""
        s_lshl_b32 s{S_ROT}, s{S_WAVE}, 2
        s_lshr_b32 s{S_T2}, s2, 3
        s_add_u32 s{S_ROT}, s{S_ROT}, s{S_T2}
        s_lshl_b32 s{S_ROT}, s{S_ROT}, 10
        """)
    KVSZ = 31*8192+1024 if PAT else 32768
    mk_srd(R_K, S_K, S_T, KVSZ)
    mk_srd(R_V, S_V, S_T, KVSZ)
    a(f"""
    s_lshl_b32 s{S_T}, s{S_H}, 3
    s_add_u32 s{S_T}, s{S_T}, s{S_J}
    s_mul_i32 s{S_T}, s{S_T}, {16*1280}
    s_sub_u32 s{S_CB}, s{S_WAVE}, 1
    s_lshl_b32 s{S_T2}, s{S_CB}, 8
    s_cmp_lt_u32 s{S_CB}, 5
    s_cselect_b32 s{S_T2}, s{S_T2}, 0
    s_cselect_b32 s{S_T3}, 1, 0
    s_add_u32 s{S_T}, s{S_T}, s{S_T2}
    s_mul_i32 s{S_EX}, s{S_T3}, {15*1280+256}
    """)
    if opt.get('not2', 0): a(f's_mov_b32 s{S_EX}, 0')
    mk_srd(R_WO, S_WO, S_T, f's{S_EX}')
    a(f"""
    s_lshl_b32 s{S_T}, s{S_CG}, 3
    s_add_u32 s{S_T}, s{S_T}, s{S_J}
    s_mul_i32 s{S_T}, s{S_T}, {8*1280}
    s_add_u32 s{S_T}, s{S_T}, s{S_T2}
    s_mul_i32 s{S_T3}, s{S_T3}, s{S_FV}
    s_mul_i32 s{S_T}, s{S_T}, s{S_T3}
    s_mul_i32 s{S_EX}, s{S_T3}, {7*1280+256}
    """)
    if opt.get('not2', 0): a(f's_mov_b32 s{S_EX}, 0')
    mk_srd(R_W2, S_W2, S_T, f's{S_EX}')
    a(f"""
    v_lshlrev_b32 v{T0+1}, 4, v{V_C}
    v_mul_u32_u24 v{V_WO}, {4*1280}, v{V_G}
    v_add_u32 v{V_WO}, v{V_WO}, v{T0+1}
    v_mul_u32_u24 v{V_W2}, {2*1280}, v{V_G}
    v_add_u32 v{V_W2}, v{V_W2}, v{T0+1}
    s_lshl_b32 s{S_T}, s{S_H}, 13
    s_add_u32 s{S_T}, s{S_T}, {WS_X1}
    """)
    mk_ptr(S_X1, S_T)
    a(f"""
    s_lshl_b32 s{S_T}, s{S_H}, 13
    s_add_u32 s{S_T}, s{S_T}, {WS_X2}
    """)
    mk_ptr(S_X2, S_T)
    a(f"""
    s_add_u32 s{S_X1B}, s{S_X1}, {WS_X1B - WS_X1}
    s_addc_u32 s{S_X1B+1}, s{S_X1+1}, 0
    s_add_u32 s{S_X2B}, s{S_X2}, {WS_X2B - WS_X2}
    s_addc_u32 s{S_X2B+1}, s{S_X2+1}, 0
    s_mov_b64 s[{EXS}:{EXS+1}], -1
    """)
    a(f"""
    s_lshl_b32 s{S_T}, s{S_H}, 3
    s_add_u32 s{S_T}, s{S_T}, s{S_J}
    s_lshl_b32 s{S_T}, s{S_T}, 6
    s_and_b32 s{S_T2}, s{S_CB}, 7
    s_lshl_b32 s{S_T2}, s{S_T2}, 17
    s_add_u32 s{S_T}, s{S_T}, s{S_T2}
    s_add_u32 s{S_T}, s{S_T}, {WS_Y}
    """)
    mk_ptr(S_Y, S_T)
    a(f"""
    s_lshr_b32 s{S_R}, s{S_H}, 3
    s_cmp_eq_u32 s{S_H}, 31
    s_cselect_b32 s{S_R}, 4, s{S_R}
    s_lshl_b32 s{S_R}, s{S_R}, 3
    s_add_u32 s{S_R}, s{S_R}, s{S_J}
    s_lshl_b32 s{S_T}, s{S_R}, 14
    s_lshl_b32 s{S_T2}, s{S_WAVE}, 11
    s_add_u32 s{S_T}, s{S_T}, s{S_T2}
    s_add_u32 s{S_T}, s{S_T}, {WS_Y}
    """)
    mk_ptr(S_YR, S_T)
    a(f"""
    v_lshrrev_b32 v{T0+1}, 1, v{V_C}
    v_lshlrev_b32 v{V_YO}, 14, v{T0+1}
    v_and_b32 v{T0+1}, 1, v{V_C}
    v_lshl_add_u32 v{V_YO}, v{T0+1}, 5, v{V_YO}
    v_lshrrev_b32 v{T0+1}, 1, v{V_G}
    v_lshl_add_u32 v{V_YO}, v{T0+1}, 4, v{V_YO}
    """)
    a(f"""
    v_cmp_gt_u32 vcc, 32, v{V_LANE}
    v_mov_b32 v{T0+1}, 256
    v_mov_b32 v{T0+2}, 512
    v_cndmask_b32 v{T0+1}, v{T0+1}, v{T0+2}, vcc
    v_mov_b32 v{T0+2}, 1536
    v_cndmask_b32 v{T0+2}, v{T0+2}, 0, vcc
    v_add_u32 v{PB1}, v{V_L16}, v{T0+2}
    v_cmp_le_u32 vcc, 48, v{V_LANE}
    v_mov_b32 v{T0+2}, 768
    v_cndmask_b32 v{T0+2}, 0, v{T0+2}, vcc
    v_add_u32 v{PB1}, v{PB1}, v{T0+2}
    v_add_u32 v{PB1+1}, v{PB1}, v{T0+1}
    v_add_u32 v{PB1+2}, v{PB1+1}, v{T0+1}
    v_add_u32 v{PB1+3}, v{PB1+2}, v{T0+1}
    s_lshl_b32 s{S_T}, s{S_J}, 6
    v_lshl_add_u32 v{T0+1}, v{V_G}, 4, s{S_T}
    v_cmp_gt_u32 vcc, 8, v{V_C}
    v_mov_b32 v{T0+2}, 512
    v_cndmask_b32 v{T0+1}, v{T0+2}, v{T0+1}, vcc
    v_and_b32 v{T0+2}, 7, v{V_C}
    v_lshl_add_u32 v{V_PA+1}, v{T0+2}, 10, v{T0+1}
    v_lshrrev_b32 v{T0+1}, 5, v{V_LANE}
    v_and_b32 v{V_PA}, 31, v{V_LANE}
    v_lshlrev_b32 v{V_PA}, 4, v{V_PA}
    v_lshl_add_u32 v{V_PA}, v{T0+1}, 10, v{V_PA}
    v_add_u32 v{V_PA+2}, 4096, v{V_PA}
    s_lshl_b32 s{S_T}, s{S_J}, 5
    s_add_u32 s{S_T}, s{S_T}, 512
    v_lshrrev_b32 v{T0+1}, 3, v{V_C}
    v_lshl_add_u32 v{V_PA+3}, v{T0+1}, 8, s{S_T}
    v_lshrrev_b32 v{T0+1}, 1, v{V_G}
    v_lshl_add_u32 v{V_PA+3}, v{T0+1}, 4, v{V_PA+3}
    v_lshl_add_u32 v{V_PA+3}, v{T0+2}, 10, v{V_PA+3}
    v_mov_b32 v{T0+1}, 0
    v_mov_b32 v{T0+2}, {L_FLAG}
    ds_write_b32 v{T0+2}, v{T0+1}
    """)
    def kv_load(i):
        r = R_K if i < 32 else R_V
        t = i % 32
        so = '0' if t < 4 else f's{S_4K + (t >> 2)}'
        slot = RSLOT[i % S]
        if ROT:
            a(f's_add_u32 s{S_4K+1}, s{S_ROT}, {t*1024}')
            a(f's_and_b32 s{S_4K+1}, s{S_4K+1}, 0x7fff')
            a.vop(f'buffer_load_dwordx4 v[{slot}:{slot+3}], v{V_L16}, {srd(r)}, s{S_4K+1} offen{nt}', f'kv{i}')
        elif PAT:
            a(f's_mov_b32 s{S_4K+1}, {t*8192}')
            a.vop(f'buffer_load_dwordx4 v[{slot}:{slot+3}], v{V_L16}, {srd(r)}, s{S_4K+1} offen{nt}', f'kv{i}')
        else:
            a.vop(f'buffer_load_dwordx4 v[{slot}:{slot+3}], v{V_L16}, {srd(r)}, {so} offen offset:{(t&3)*1024}{nt}', f'kv{i}')
    nxt = [0]
    capE, capO = opt.get('capE', 0), opt.get('capO', 0)
    capn = [0]
    def cap():
        if capE and capO:
            if capE == capO:
                a(f's_waitcnt vmcnt({capE-1})')
            else:
                capn[0] += 1
                a(f's_cbranch_scc1 L_capo{capn[0]}')
                a(f's_waitcnt vmcnt({min(capE, capO)-1})' if False else f's_waitcnt vmcnt({capE-1})')
                a(f'L_capo{capn[0]}:')
                if capO < capE: raise ValueError
                a(f's_waitcnt vmcnt({capO-1})')
        elif capE:
            capn[0] += 1
            a(f's_cbranch_scc1 L_capo{capn[0]}')
            a(f's_waitcnt vmcnt({capE-1})')
            a(f'L_capo{capn[0]}:')
    def issue(n):
        for _ in range(n):
            if nxt[0] < 64:
                kv_load(nxt[0]); nxt[0] += 1

    a.vwait('x')
    a(f"""
    v_lshlrev_b32 v{T0+4}, 2, v{V_LANE}
    ds_write_b128 v{V_L16}, v[{A0}:{A0+3}] offset:{L_X}
    ds_write_b32 v{T0+4}, v{A0+4} offset:{L_X+1024}
    """)
    for t in range(5): a(f'ds_read_u16 v{A0+8+t}, v{XL+t} offset:{L_X}')
    a(f"""
    s_lshl_b32 s{S_T}, s{S_R}, 5
    v_lshl_add_u32 v{T0+5}, v{V_C}, 1, s{S_T}
    ds_read_u16 v{V_XC}, v{T0+5} offset:{L_X}
    """)
    SUM, SQ = A0+13, A0+14
    a(f'v_mov_b32 v{T0+2}, 0x3f803f80')
    a(f'v_dot2_f32_bf16 v{SUM}, v{A0}, v{T0+2}, 0')
    a(f'v_dot2_f32_bf16 v{SQ}, v{A0}, v{A0}, 0')
    for i in range(1, 5):
        a(f'v_dot2_f32_bf16 v{SUM}, v{A0+i}, v{T0+2}, v{SUM}')
        a(f'v_dot2_f32_bf16 v{SQ}, v{A0+i}, v{A0+i}, v{SQ}')
    allred_multi([SUM, SQ], [T0+2, T0+3], ['v_add_f32', 'v_add_f32'])
    a(f"""
    v_mul_f32 v{SUM}, {INV640}, v{SUM}
    v_mul_f32 v{SQ}, {INV640}, v{SQ}
    v_fma_f32 v{SQ}, -v{SUM}, v{SUM}, v{SQ}
    """)
    rne(SUM, SUM); rne(SQ, SQ)
    a(f'v_add_f32 v{SQ}, {EPS}, v{SQ}')
    rne(SQ, SQ)
    a(f'v_sqrt_f32 v{SQ}, v{SQ}')
    rne(SQ, SQ)
    a(f'v_rcp_f32 v{SQ}, v{SQ}')
    a('s_waitcnt lgkmcnt(0)')
    for t in range(5): a(f'v_lshlrev_b32 v{A0+8+t}, 16, v{A0+8+t}')
    for t in range(5): a(f'v_sub_f32 v{A0+8+t}, v{A0+8+t}, v{SUM}')
    for t in range(5): rne(A0+8+t, A0+8+t)
    for t in range(5): a(f'v_mul_f32 v{A0+8+t}, v{A0+8+t}, v{SQ}')
    for t in range(5): rne(XH+t, A0+8+t)
    for t in range(5): a(f'v_lshrrev_b32 v{XL+t}, 16, v{XH+t}')
    for i in range(8): a(f'v_mov_b32 v{OACC+i}, 0')
    D = opt.get('D', 4)
    stamp('LN')
    a(f"""
    s_waitcnt lgkmcnt(0)
    s_mul_i32 s{S_TAG}, s{S_TAG}, {LCG_A}
    s_add_u32 s{S_TAG}, s{S_TAG}, {LCG_C}
    """)
    for k in range(4): a(f's_bfe_u32 s{S_TB+k}, s{S_TAG}, {(8 << 16) | (8*k)}')
    a(f"""
    s_cmp_eq_u32 s{S_WAVE}, 0
    s_cbranch_scc1 L_w0a
    """)
    a.vm = ['t1']
    issue(kpre)
    a.vwait('t1')
    a(f"""
    s_branch L_j1
    L_w0a:
    s_waitcnt vmcnt(0)
    L_j1:
    """)
    for t in range(5):
        for i in range(4):
            a(f'v_dot2c_f32_bf16 v{OACC+2*i}, v{XL+t}, v{T1R+4*t+i}')
            a(f'v_dot2c_f32_bf16 v{OACC+2*i+1}, v{XH+t}, v{T1R+4*t+i}')
    reduce_g(OACC)
    a(f"""
    s_lshl_b32 s{S_T}, s{S_WAVE}, 9
    v_lshlrev_b32 v{T0}, 5, v{V_C}
    v_lshl_add_u32 v{T0}, v{V_G}, 3, v{T0}
    v_add_u32 v{T0}, s{S_T}, v{T0}
    ds_write_b64 v{T0}, v[{OACC}:{OACC+1}] offset:{L_P1}
    s_waitcnt lgkmcnt(0)
    s_barrier
    s_cmp_lg_u32 s{S_WAVE}, 0
    s_cbranch_scc1 L_nopub1
    """)
    for k in range(4): a(f'ds_read_b128 v[{A0+4*k}:{A0+4*k+3}], v{PB1+k} offset:{L_P1}')
    a(f"""
    s_lshl_b32 s{S_T}, s{S_J}, 10
    v_add_u32 v{T0}, s{S_T}, v{V_L16}
    s_waitcnt lgkmcnt(2)
    """)
    for k in range(4): a(f'v_add_f32 v{A0+k}, v{A0+k}, v{A0+4+k}')
    a('s_waitcnt lgkmcnt(0)')
    for k in range(4): a(f'v_add_f32 v{A0+8+k}, v{A0+8+k}, v{A0+12+k}')
    for k in range(4): a(f'v_add_f32 v{A0+k}, v{A0+k}, v{A0+8+k}')
    tag4(A0)
    a(f"""
    """)
    if fast: a(f'global_store_dwordx4 v{T0}, v[{A0}:{A0+3}], s[{S_X1}:{S_X1+1}]')
    else: a(f'global_store_dwordx4 v{T0}, v[{A0}:{A0+3}], s[{S_X1B}:{S_X1B+1}] sc1')
    stamp('pub1')
    TQ = A0 + 8
    PQ = RING
    pb_init(S_X1, S_X1B)
    if fast:
        a(f"""
        global_load_dwordx4 v[{PQ}:{PQ+3}], v{V_PA}, s[{S_PB}:{S_PB+1}] sc1
        global_load_dwordx4 v[{PQ+4}:{PQ+7}], v{V_PA}, s[{S_PB}:{S_PB+1}] offset:2048 sc1
        global_load_dwordx4 v[{PQ+8}:{PQ+11}], v{V_PA+2}, s[{S_PB}:{S_PB+1}] sc1
        global_load_dwordx4 v[{PQ+12}:{PQ+15}], v{V_PA+2}, s[{S_PB}:{S_PB+1}] offset:2048 sc1
        global_store_dwordx4 v{T0}, v[{A0}:{A0+3}], s[{S_X1B}:{S_X1B+1}] sc1
        s_mov_b32 s{S_CNT}, 0
        s_waitcnt vmcnt(1)
        s_branch L_p1_chk
        """)
    a(f"""
    s_mov_b32 s{S_CNT}, 0
    L_p1_ld:
    global_load_dwordx4 v[{PQ}:{PQ+3}], v{V_PA}, s[{S_PB}:{S_PB+1}] sc1
    global_load_dwordx4 v[{PQ+4}:{PQ+7}], v{V_PA}, s[{S_PB}:{S_PB+1}] offset:2048 sc1
    global_load_dwordx4 v[{PQ+8}:{PQ+11}], v{V_PA+2}, s[{S_PB}:{S_PB+1}] sc1
    global_load_dwordx4 v[{PQ+12}:{PQ+15}], v{V_PA+2}, s[{S_PB}:{S_PB+1}] offset:2048 sc1
    s_waitcnt vmcnt(0)
    L_p1_chk:
    """)
    for r in range(4):
        a(f'v_perm_b32 v{TQ+2*r}, v{PQ+4*r+1}, v{PQ+4*r}, s{S_SEL1}')
        a(f'v_perm_b32 v{TQ+2*r+1}, v{PQ+4*r+3}, v{PQ+4*r+2}, s{S_SEL2}')
    for r in range(4): a(f'v_or_b32 v{TQ+2*r}, v{TQ+2*r}, v{TQ+2*r+1}')
    for r in range(4): a(f'v_xor_b32 v{TQ+2*r}, s{S_TAG}, v{TQ+2*r}')
    a(f"""
    v_or_b32 v{TQ}, v{TQ}, v{TQ+2}
    v_or_b32 v{TQ+4}, v{TQ+4}, v{TQ+6}
    v_or_b32 v{TQ}, v{TQ}, v{TQ+4}
    v_cmp_ne_u32 vcc, 0, v{TQ}
    s_cbranch_vccz L_p1_ok
    s_mov_b64 exec, vcc
    s_add_u32 s{S_CNT}, s{S_CNT}, 1
    """)
    pb_next(S_X1, S_X1B)
    a(f"""
    s_cmp_lt_u32 s{S_CNT}, s{S_LIM}
    s_cbranch_scc1 L_p1_ld
    L_p1_ok:
    s_mov_b64 exec, -1
    """)
    for k in range(16): a(f'v_and_b32 v{PQ+k}, v{PQ+k}, v{V_MASK}')
    for k in range(8): a(f'v_add_f32 v{PQ+k}, v{PQ+k}, v{PQ+8+k}')
    for k in range(4): a(f'v_add_f32 v{PQ+k}, v{PQ+k}, v{PQ+4+k}')
    for k in range(4): a(f'v_permlane32_swap_b32 v{PQ+k}, v{PQ+4+k}')
    for k in range(4): a(f'v_add_f32 v{PQ+k}, v{PQ+k}, v{PQ+4+k}')
    a(f"""
    v_cvt_pk_bf16_f32 v{A0}, v{PQ}, v{PQ+1}
    v_cvt_pk_bf16_f32 v{A0+1}, v{PQ+2}, v{PQ+3}
    v_lshlrev_b32 v{T0}, 3, v{V_LANE}
    v_mov_b32 v{T0+1}, 1
    v_mov_b32 v{T0+2}, {L_FLAG}
    s_mov_b32 exec_hi, 0
    ds_write_b64 v{T0}, v[{A0}:{A0+1}] offset:{L_Q}
    s_mov_b32 exec_hi, -1
    ds_write_b32 v{T0+2}, v{T0+1}
    """)
    keepn = nxt[0]
    nxt[0] = 0; a.vm = []
    issue(S)
    a(f"""
    s_branch L_j2
    L_nopub1:
    """)
    stamp_skip = nst[0]
    nxt[0] = keepn; a.vm = [f'kv{i}' for i in range(keepn)]
    while nxt[0] < min(D, S): issue(1)
    n = 0
    while nxt[0] < S:
        a.vwait(f'kv{n}')
        issue(1); n += 1
    if dry:
        a(f"""
        s_cmp_lg_u32 s{S_WAVE}, {opt.get('dryw', 3)}
        s_cbranch_scc1 L_j2
        s_mov_b32 s{S_SV[0]}, s{S_WAVE}
        s_mov_b32 s{S_SV[1]}, s{S_CB}
        s_mov_b32 s{S_SV[2]}, s{S_FV}
        s_mov_b32 s{S_SV[3]}, s{S_R}
        s_mov_b32 s{S_WAVE}, 0
        s_mov_b32 s{S_CB}, 7
        s_mov_b32 s{S_FV}, 0
        s_mov_b32 s{S_R}, 0
        s_mov_b64 s[{EXS}:{EXS+1}], 0
        s_mov_b64 exec, 0
        s_branch L_tail
        L_dry_ret:
        s_mov_b32 s{S_WAVE}, s{S_SV[0]}
        s_mov_b32 s{S_CB}, s{S_SV[1]}
        s_mov_b32 s{S_FV}, s{S_SV[2]}
        s_mov_b32 s{S_R}, s{S_SV[3]}
        s_mov_b64 s[{EXS}:{EXS+1}], -1
        s_mov_b64 exec, -1
        """)
    a('L_j2:')
    a.vm = [f'kv{i}' for i in range(S)]
    a(f"""
    v_mov_b32 v{T0+2}, {L_FLAG}
    v_lshlrev_b32 v{T0+1}, 4, v{V_C}
    s_mov_b32 s{S_CNT}, 0
    L_q_ld:
    ds_read_b32 v{T0}, v{T0+2}
    ds_read_b128 v[{QF}:{QF+3}], v{T0+1} offset:{L_Q}
    s_waitcnt lgkmcnt(0)
    v_cmp_ne_u32 vcc, 1, v{T0}
    s_cbranch_vccz L_q_ok
    s_add_u32 s{S_CNT}, s{S_CNT}, 1
    s_cmp_lt_u32 s{S_CNT}, 4000000
    s_cbranch_scc1 L_q_ld
    L_q_ok:
    """)
    stamp('qrdy')
    a('s_bitcmp1_b32 s2, 0')
    def k_step(i):
        a.vwait(f'kv{i}')
        slot = RSLOT[i % S]; acc = A0 + (i % 16)
        a(f'v_dot2_f32_bf16 v{acc}, v{slot}, v{QF}, 0')
        for j in range(1, 4): a(f'v_dot2_f32_bf16 v{acc}, v{slot+j}, v{QF+j}, v{acc}')
        if i >= skip:
            if nxt[0] < 64: cap()
            issue(1)
        t2at = opt.get('t2at', 2)
        if i == t2at + 6:
            a.vop(f'global_load_dwordx4 v[{POLL}:{POLL+3}], v{V_PA+3}, s[{S_X1B}:{S_X1B+1}] sc1', 'pf')
        if t2at <= i < t2at + 6:
            t = i - t2at
            if t < 2:
                a.vop(f'buffer_load_dwordx4 v[{T2R+16+4*t}:{T2R+16+4*t+3}], v{V_W2}, {srd(R_W2)}, 0 offen offset:{1280*t}{ntw2}', 't2')
            elif not opt.get('wov', 0):
                t -= 2
                a.vop(f'buffer_load_dwordx4 v[{T2R+4*t}:{T2R+4*t+3}], v{V_WO}, {srd(R_WO)}, 0 offen offset:{1280*t}{ntw2}', 't3')
    for i in range(16): k_step(i)
    transpose_reduce(V_SA)
    for i in range(16, 32): k_step(i)
    transpose_reduce(V_SB)
    for s in (V_SA, V_SB):
        rne(s, s)
        a(f'v_mul_f32 v{s}, {SCALE}, v{s}')
        rne(s, s)
    a(f'v_max_f32 v{T0}, v{V_SA}, v{V_SB}')
    allred_multi([T0], [T0+1], ['v_max_f32'])
    a(f"""
    v_sub_f32 v{V_SA}, v{V_SA}, v{T0}
    v_sub_f32 v{V_SB}, v{V_SB}, v{T0}
    v_mul_f32 v{V_SA}, {LOG2E}, v{V_SA}
    v_mul_f32 v{V_SB}, {LOG2E}, v{V_SB}
    v_exp_f32 v{V_SA}, v{V_SA}
    v_exp_f32 v{V_SB}, v{V_SB}
    v_add_f32 v{T0+1}, v{V_SA}, v{V_SB}
    """)
    rne(V_PHA, V_SA); rne(V_PHB, V_SB)
    a(f'v_lshrrev_b32 v{V_PLA}, 16, v{V_PHA}')
    a(f'v_lshrrev_b32 v{V_PLB}, 16, v{V_PHB}')
    for i in range(8): a(f'v_mov_b32 v{OACC+i}, 0')
    for i in range(8): a(f'v_mov_b32 v{YACC+i}, 0')
    allred_multi([T0+1], [T0+2], ['v_add_f32'])
    a(f"""
    s_lshl_b32 s{S_T}, s{S_WAVE}, 3
    v_mov_b32 v{T0+2}, s{S_T}
    ds_write_b64 v{T0+2}, v[{T0}:{T0+1}] offset:{L_ML}
    """)
    stamp('Kdone')
    a.vwait('t2'); a.vwait('pf')
    a(f"""
    s_cmp_ge_u32 s{S_CB}, 5
    s_cbranch_scc1 L_noffn
    s_mov_b32 s{S_CNT}, 0
    L_pf_chk:
    """)
    tagchk(POLL, T0, T0+1)
    a(f"""
    v_cmp_ne_u32 vcc, s{S_TAG}, v{T0}
    s_cbranch_vccz L_pf_ok
    s_add_u32 s{S_CNT}, s{S_CNT}, 1
    s_cmp_ge_u32 s{S_CNT}, s{S_LIM}
    s_cbranch_scc1 L_pf_ok
    global_load_dwordx4 v[{POLL}:{POLL+3}], v{V_PA+3}, s[{S_X1B}:{S_X1B+1}] sc1
    s_waitcnt vmcnt(0)
    s_branch L_pf_chk
    L_pf_ok:
    v_and_b32 v{T0}, 1, v{V_G}
    v_cmp_eq_u32 vcc, 1, v{T0}
    v_cndmask_b32 v{A0}, v{POLL}, v{POLL+2}, vcc
    v_cndmask_b32 v{A0+1}, v{POLL+1}, v{POLL+3}, vcc
    v_and_b32 v{A0}, v{A0}, v{V_MASK}
    v_and_b32 v{A0+1}, v{A0+1}, v{V_MASK}
    """)
    red8([A0, A0+1], 'v_add_f32')
    a(f'v_mov_b32_dpp v{A0+2}, v{A0} row_ror:8 {DPPM}')
    a(f'v_mov_b32_dpp v{A0+3}, v{A0+1} row_ror:8 {DPPM}')
    for k in range(4): rne(A0+k, A0+k)
    for k in range(2): a(f'v_mul_f32 v{A0+4+k}, {LOG2E ^ 0x80000000}, v{A0+k}')
    for k in range(2): a(f'v_exp_f32 v{A0+4+k}, v{A0+4+k}')
    for k in range(2): a(f'v_add_f32 v{A0+4+k}, 1.0, v{A0+4+k}')
    for k in range(2): a(f'v_rcp_f32 v{A0+4+k}, v{A0+4+k}')
    for k in range(2): a(f'v_mul_f32 v{A0+4+k}, v{A0+k}, v{A0+4+k}')
    for k in range(2): rne(A0+4+k, A0+4+k)
    for k in range(2): a(f'v_mul_f32 v{A0+4+k}, v{A0+4+k}, v{A0+2+k}')
    for k in range(2): rne(FH+2+k, A0+4+k)
    for k in range(2): a(f'v_lshrrev_b32 v{FH+k}, 16, v{FH+2+k}')
    for t in range(2):
        for i in range(4):
            a(f'v_dot2c_f32_bf16_dpp v{YACC+2*i}, v{FH+t}, v{T2R+16+4*t+i} row_newbcast:0 {DPPM}')
            a(f'v_dot2c_f32_bf16_dpp v{YACC+2*i+1}, v{FH+2+t}, v{T2R+16+4*t+i} row_newbcast:0 {DPPM}')
    a('L_noffn:')
    wov = opt.get('wov', 0)
    a('s_bitcmp1_b32 s2, 0')
    for i in range(32, 64):
        a.vwait(f'kv{i}')
        slot = RSLOT[i % S]
        lo, hi = (V_PLA, V_PHA) if i < 48 else (V_PLB, V_PHB)
        ln = i % 16
        for j in range(4):
            a(f'v_dot2c_f32_bf16_dpp v{OACC+2*j}, v{lo}, v{slot+j} row_newbcast:{ln} {DPPM}')
            a(f'v_dot2c_f32_bf16_dpp v{OACC+2*j+1}, v{hi}, v{slot+j} row_newbcast:{ln} {DPPM}')
        if nxt[0] < 64: cap()
        issue(1)
        if wov and wov <= i < wov + 4:
            t = i - wov
            a.vop(f'buffer_load_dwordx4 v[{T2R+4*t}:{T2R+4*t+3}], v{V_WO}, {srd(R_WO)}, 0 offen offset:{1280*t}{ntw2}', 't3')
    stamp('Vdone')
    RX = f's[{EXS}:{EXS+1}]'
    def skipdry(label):
        if dry: a(f's_cbranch_execz {label}')
    a('L_tail:')
    reduce_g(OACC)
    a.vwait('t3')
    a(f"""
    s_lshl_b32 s{S_T}, s{S_WAVE}, 9
    v_lshlrev_b32 v{T0}, 5, v{V_C}
    v_lshl_add_u32 v{T0}, v{V_G}, 3, v{T0}
    v_add_u32 v{T0}, s{S_T}, v{T0}
    ds_write_b64 v{T0}, v[{OACC}:{OACC+1}] offset:{L_O}
    v_lshrrev_b32 v{T0+1}, 5, v{V_LANE}
    v_lshl_add_u32 v{T0+2}, v{T0+1}, 2, v{V_LANE}
    v_and_b32 v{T0+2}, 7, v{T0+2}
    v_lshlrev_b32 v{T0+2}, 3, v{T0+2}
    v_and_b32 v{T0+3}, 31, v{V_LANE}
    v_lshlrev_b32 v{T0+3}, 4, v{T0+3}
    v_lshl_add_u32 v{T0+3}, v{T0+1}, 11, v{T0+3}
    s_waitcnt lgkmcnt(0)
    """)
    skipdry('L_nobarC')
    a(f"""
    s_barrier
    L_nobarC:
    s_cmp_lt_u32 s{S_CB}, 5
    s_cbranch_scc1 L_nopub2
    s_cmp_lg_u32 s{S_WAVE}, 0
    s_cbranch_scc1 L_red
    ds_read_b64 v[{T0+4}:{T0+5}], v{T0+2} offset:{L_ML}
    """)
    for w in range(4): a(f'ds_read_b128 v[{A0+4*w}:{A0+4*w+3}], v{T0+3} offset:{L_O + 512*w}')
    a(f"""
    s_lshl_b32 s{S_T}, s{S_J}, 10
    v_add_u32 v{T0+2}, s{S_T}, v{V_L16}
    s_mov_b32 s{S_EX}, 0
    s_movk_i32 s{S_EX+1}, 0xff
    s_waitcnt lgkmcnt(4)
    v_mov_b32 v{T0}, v{T0+4}
    """)
    red8([T0], 'v_max_f32')
    a(f"""
    v_sub_f32 v{T0+4}, v{T0+4}, v{T0}
    v_mul_f32 v{T0+4}, {LOG2E}, v{T0+4}
    v_exp_f32 v{T0+4}, v{T0+4}
    s_waitcnt lgkmcnt(0)
    v_mul_f32 v{T0+5}, v{T0+4}, v{T0+5}
    """)
    for k in range(4): a(f'v_mul_f32_dpp v{OACC+k}, v{T0+4}, v{A0+k} row_newbcast:0 {DPPM}')
    red8([T0+5], 'v_add_f32')
    for w in range(1, 4):
        for k in range(4): a(f'v_fmac_f32_dpp v{OACC+k}, v{T0+4}, v{A0+4*w+k} row_newbcast:{w} {DPPM}')
    for k in range(4): a(f'v_permlane32_swap_b32 v{OACC+k}, v{OACC+4+k}')
    for k in range(4): a(f'v_add_f32 v{OACC+k}, v{OACC+k}, v{OACC+4+k}')
    for k in range(4): a(f'v_cndmask_b32 v{OACC+k}, v{OACC+k}, v{T0 if k % 2 == 0 else T0+5}, s[{S_EX}:{S_EX+1}]')
    tag4(OACC)
    a(f's_and_b32 exec_hi, exec_hi, 0xff')
    if fast: a(f'global_store_dwordx4 v{T0+2}, v[{OACC}:{OACC+3}], s[{S_X2}:{S_X2+1}]')
    a(f"""
    global_store_dwordx4 v{T0+2}, v[{OACC}:{OACC+3}], s[{S_X2B}:{S_X2B+1}] sc1
    s_mov_b64 exec, {RX}
    """)
    stamp('pub2')
    a("""
    s_cbranch_execnz L_red
    L_nopub2:
    """)
    pb_init(S_X2, S_X2B)
    a(f"""
    s_mov_b32 s{S_CNT}, 0
    """)
    skipdry('L_p2_ok')
    a(f"""
    L_p2_ld:
    global_load_dwordx4 v[{POLL}:{POLL+3}], v{V_PA+1}, s[{S_PB}:{S_PB+1}] sc1
    s_waitcnt vmcnt(0)
    """)
    tagchk(POLL, T0, T0+1)
    a(f"""
    v_cmp_ne_u32 vcc, s{S_TAG}, v{T0}
    s_cbranch_vccz L_p2_ok
    s_mov_b64 exec, vcc
    s_add_u32 s{S_CNT}, s{S_CNT}, 1
    """)
    pb_next(S_X2, S_X2B)
    a(f"""
    s_cmp_lt_u32 s{S_CNT}, s{S_LIM}
    s_cbranch_scc1 L_p2_ld
    L_p2_ok:
    s_mov_b64 exec, {RX}
    """)
    if stamps >= 2:
        stamp('x2ok'); a(f's_mov_b32 s100, s{S_CNT}')
    for k in range(4): a(f'v_and_b32 v{POLL+k}, v{POLL+k}, v{V_MASK}')
    a(f'v_mov_b32 v{T0}, v{POLL}')
    red8([T0], 'v_max_f32')
    a(f"""
    v_sub_f32 v{T0+1}, v{POLL}, v{T0}
    v_mul_f32 v{T0+1}, {LOG2E}, v{T0+1}
    v_exp_f32 v{T0+1}, v{T0+1}
    v_mul_f32 v{T0+2}, v{T0+1}, v{POLL+1}
    """)
    for k in range(4): a(f'v_mul_f32_dpp v{A0+k}, v{T0+1}, v{POLL+k} row_ror:8 {DPPM}')
    red8([T0+2, A0, A0+1, A0+2, A0+3], 'v_add_f32')
    a(f'v_rcp_f32 v{T0+2}, v{T0+2}')
    for k in range(4): a(f'v_mul_f32_dpp v{A0+k}, v{T0+2}, v{A0+k} row_ror:8 {DPPM}')
    for k in range(4): rne(A0+4+k, A0+k)
    for k in range(4): a(f'v_lshrrev_b32 v{A0+k}, 16, v{A0+4+k}')
    for t in range(4):
        for i in range(4):
            a(f'v_dot2c_f32_bf16_dpp v{YACC+2*i}, v{A0+t}, v{T2R+4*t+i} row_newbcast:0 {DPPM}')
            a(f'v_dot2c_f32_bf16_dpp v{YACC+2*i+1}, v{A0+4+t}, v{T2R+4*t+i} row_newbcast:0 {DPPM}')
    stamp('gemv')
    reduce_g(YACC)
    a(f'v_permlane16_swap_b32 v{YACC}, v{YACC+2}')
    a(f'v_permlane16_swap_b32 v{YACC+1}, v{YACC+3}')
    tag4(YACC)
    a(f"""
    s_and_b32 exec_lo, exec_lo, 0xffff
    s_and_b32 exec_hi, exec_hi, 0xffff
    global_store_dwordx4 v{V_YO}, v[{YACC}:{YACC+3}], s[{S_Y}:{S_Y+1}] sc1
    s_mov_b64 exec, {RX}
    L_red:
    """)
    stamp('pubY')
    a(f"""
    s_cmp_lg_u32 s{S_FV}, 0
    s_cbranch_scc1 L_fin
    v_and_b32 v{T0+4}, 3, v{V_LANE}
    v_lshlrev_b32 v{T0+4}, 4, v{T0+4}
    v_lshrrev_b32 v{T0+5}, 2, v{V_C}
    v_lshl_add_u32 v{T0+4}, v{T0+5}, 2, v{T0+4}
    s_lshl_b32 s{S_T}, s{S_WAVE}, 6
    v_add_u32 v{T0+4}, s{S_T}, v{T0+4}
    s_mov_b32 s{S_CNT}, 0
    """)
    skipdry('L_p3_ok')
    a(f"""
    L_p3_ld:
    global_load_dwordx4 v[{POLL}:{POLL+3}], v{V_L16}, s[{S_YR}:{S_YR+1}] sc1
    global_load_dwordx4 v[{POLL+4}:{POLL+7}], v{V_L16}, s[{S_YR}:{S_YR+1}] offset:1024 sc1
    s_waitcnt vmcnt(0)
    """)
    tagchk(POLL, T0, T0+1)
    tagchk(POLL+4, T0+2, T0+3)
    a(f"""
    v_cmp_ne_u32 vcc, s{S_TAG}, v{T0}
    v_cmp_ne_u32 s[{S_EX}:{S_EX+1}], s{S_TAG}, v{T0+2}
    s_or_b64 vcc, vcc, s[{S_EX}:{S_EX+1}]
    s_cbranch_vccz L_p3_ok
    s_mov_b64 exec, vcc
    s_add_u32 s{S_CNT}, s{S_CNT}, 1
    s_cmp_lt_u32 s{S_CNT}, s{S_LIM}
    s_cbranch_scc1 L_p3_ld
    L_p3_ok:
    s_mov_b64 exec, {RX}
    """)
    if stamps >= 2:
        stamp('yok'); a(f's_mov_b32 s101, s{S_CNT}')
    for k in range(8): a(f'v_and_b32 v{POLL+k}, v{POLL+k}, v{V_MASK}')
    for k in range(4): a(f'v_add_f32 v{POLL+k}, v{POLL+k}, v{POLL+4+k}')
    for k in range(2): a(f'v_add_f32_dpp v{POLL+k}, v{POLL+k}, v{POLL+k} row_ror:8 row_mask:0xf bank_mask:0x3')
    for k in range(2): a(f'v_add_f32_dpp v{POLL+k}, v{POLL+2+k}, v{POLL+2+k} row_ror:8 row_mask:0xf bank_mask:0xc')
    a(f'v_add_f32_dpp v{POLL}, v{POLL}, v{POLL} row_shl:4 row_mask:0xf bank_mask:0x5')
    a(f'v_add_f32_dpp v{POLL}, v{POLL+1}, v{POLL+1} row_shr:4 row_mask:0xf bank_mask:0xa')
    rows_multi([POLL], [T0], ['v_add_f32'], (16, 32))
    a(f"""
    s_and_b64 exec, exec, 0xffff
    ds_write_b32 v{T0+4}, v{POLL} offset:{L_R}
    s_mov_b64 exec, {RX}
    v_lshlrev_b32 v{T0}, 2, v{V_LANE}
    s_waitcnt lgkmcnt(0)
    """)
    skipdry('L_nobarE')
    a(f"""
    s_barrier
    L_nobarE:
    s_cmp_lg_u32 s{S_WAVE}, 0
    s_cbranch_scc1 L_fin
    ds_read_b32 v{T0+1}, v{T0} offset:{L_R}
    ds_read_b32 v{T0+2}, v{T0} offset:{L_R+256}
    v_lshlrev_b32 v{V_XC}, 16, v{V_XC}
    s_lshl_b32 s{S_T}, s{S_R}, 5
    v_lshlrev_b32 v{T0+3}, 1, v{V_C}
    s_mov_b32 s{R_X}, s{S_OUT}
    s_mov_b32 s{R_X+1}, s{S_OUT+1}
    s_waitcnt lgkmcnt(0)
    v_add_f32 v{T0+1}, v{T0+1}, v{T0+2}
    """)
    rows_multi([T0+1], [T0+2], ['v_add_f32'], (16, 32))
    a(f"""
    v_add_f32 v{T0+1}, v{T0+1}, v{V_XC}
    v_cvt_pk_bf16_f32 v{T0+1}, v{T0+1}, v{T0+1}
    s_and_b64 exec, exec, 0xffff
    buffer_store_short v{T0+1}, v{T0+3}, {srd(R_X)}, s{S_T} offen
    s_mov_b64 exec, {RX}
    s_cmp_lg_u32 s{S_R}, 0
    s_cbranch_scc1 L_fin
    v_mov_b32 v{T0}, 0
    v_mov_b32 v{T0+1}, s{S_TAG}
    s_and_b64 exec, exec, 1
    global_store_dword v{T0}, v{T0+1}, s[{S_WS}:{S_WS+1}]
    s_mov_b64 exec, {RX}
    L_fin:
    """)
    if dry: a('s_cbranch_execz L_dry_ret')
    if stamps:
        stamp('end')
        n = nst[0]
        a('s_waitcnt lgkmcnt(0)')
        for j in range(n):
            a(f'v_mov_b32 v{STV+2*j}, s{streg(j)}')
            a(f'v_mov_b32 v{STV+2*j+1}, s{streg(j)+1}')
        a(f"""
        s_lshl_b32 s{S_T}, s2, 3
        s_add_u32 s{S_T}, s{S_T}, s{S_WAVE}
        s_lshl_b32 s{S_T}, s{S_T}, 7
        s_add_u32 s{S_T}, s{S_T}, {WS_STAMP}
        v_mov_b32 v{T0}, s{S_T}
        s_mov_b64 exec, 1
        """)
        for j in range(n): a(f'global_store_dwordx2 v{T0}, v[{STV+2*j}:{STV+2*j+1}], s[{S_WS}:{S_WS+1}] offset:{8*j}')
        if stamps >= 2:
            a(f'v_mov_b32 v{STV}, s100')
            a(f'v_mov_b32 v{STV+1}, s101')
            a(f'global_store_dwordx2 v{T0}, v[{STV}:{STV+1}], s[{S_WS}:{S_WS+1}] offset:{8*n}')
    a("""
    L_end:
    s_endpgm
    """)
    lines = hazard.fix(a.lines, verbose=True)
    body = '\n'.join(lines) + '\n'
    return kernel_file([(NAME + '_kernel', body, 256, 102, 256)], [f'; @launch grid=(256,1,1) block=(512,1,1) lds={LDS_SIZE}'])

if __name__ == '__main__':
    out = sys.argv[1]
    opt = dict(kv.split('=') for kv in sys.argv[2:])
    opt = {k: int(v) for k, v in opt.items()}
    open(out, 'w').write(gen(opt))
```
